```python
import torch

def _softmax(x, axis=-1):
    return torch.softmax(x, dim=axis)
def _gelu(x):
    return torch.nn.functional.gelu(x, approximate="tanh")
def _silu(x):
    return torch.nn.functional.silu(x)
def _sigmoid(x):
    return torch.sigmoid(x)
def _layernorm(x, axis=-1, eps=1e-5):
    m = x.mean(dim=axis, keepdim=True)
    v = x.var(dim=axis, keepdim=True, unbiased=False)
    return (x - m) / torch.sqrt(v + eps)
def _scatter_add(tgt, idx, src, axis=0):
    return tgt.clone().index_add_(axis, idx, src)
def _segment_sum(src, seg, n):
    out = torch.zeros((n,) + src.shape[1:], dtype=src.dtype)
    return out.index_add_(0, seg, src)
def _pad(x, pw):
    flat = tuple(v for pair in reversed(pw) for v in pair)
    return torch.nn.functional.pad(x, flat)

kernel_name = 'parallel_sum__sliding_block_cached__geglu_ffn__decode'

def setup_inputs():

    _w = (lambda a: (lambda t: t.to(torch.bfloat16) if t.is_floating_point() else t)(torch.as_tensor(a)))
    def _A_setup():
        B, Sq, D = 4, 1, 640
        Hq, Hkv, Sk, Dh = 32, 32, 8192, 192
        assert Hq % Hkv == 0, (Hq, Hkv)
        return {
            "x": _w((lambda *s: torch.randn(*s, dtype=torch.bfloat16) * 0.05)(B, Sq, D)),
            "k_cache": _w((lambda *s: torch.randn(*s, dtype=torch.bfloat16) * 3.2)(B, Hkv, Sk, Dh)),
            "v_cache": _w((lambda *s: torch.randn(*s, dtype=torch.bfloat16) * 1.6)(B, Hkv, Sk, Dh)),
            "wq": _w((lambda *s: torch.randn(*s, dtype=torch.bfloat16) * 3.2)(D, Hq * Dh) * (D ** -0.5)),
            "wo": _w((lambda *s: torch.randn(*s, dtype=torch.bfloat16) * 1.6)(Hq * Dh, D) * ((Hq * Dh) ** -0.5)),
        }
    _A_in = _A_setup()

    def _B_setup():
        B, S, D, F = 4, 1, 640, 1536
        return {
            "x": _w((lambda *s: torch.randn(*s, dtype=torch.bfloat16) * 0.05)(B, S, D)),
            "w_gate": _w((lambda *s: torch.randn(*s, dtype=torch.bfloat16) * 0.05)(D, F)),
            "w_up": _w((lambda *s: torch.randn(*s, dtype=torch.bfloat16) * 0.05)(D, F)),
            "w_down": _w((lambda *s: torch.randn(*s, dtype=torch.bfloat16) * 0.05)(F, D)),
        }
    _B_in = _B_setup()

    return {
        "A_x": _A_in["x"],
        "A_k_cache": _A_in["k_cache"],
        "A_v_cache": _A_in["v_cache"],
        "A_wq": _A_in["wq"],
        "A_wo": _A_in["wo"],
        "B_x": _B_in["x"],
        "B_w_gate": _B_in["w_gate"],
        "B_w_up": _B_in["w_up"],
        "B_w_down": _B_in["w_down"],
    }

def reference(A_x, A_k_cache, A_v_cache, A_wq, A_wo, B_x, B_w_gate, B_w_up, B_w_down):
    def _A_ref(x, k_cache, v_cache, wq, wo):
        B, Sq, D = x.shape
        Hq, Dh = 32, 192
        Hkv, Sk = k_cache.shape[1], k_cache.shape[2]
        W = min(4096, max(256, Sk // 4))
        rep = Hq // Hkv
        q = (lambda x, *d: x.permute(*d))((x @ wq).reshape(B, Sq, Hq, Dh), 0, 2, 1, 3)
        k = (lambda x, n, axis: torch.repeat_interleave(x, n, dim=axis))(k_cache[:, :, Sk - W:, :], rep, axis=1)
        v = (lambda x, n, axis: torch.repeat_interleave(x, n, dim=axis))(v_cache[:, :, Sk - W:, :], rep, axis=1)
        scores = torch.einsum("bhqd,bhkd->bhqk", q, k) * (Dh ** -0.5)
        p = _softmax(scores, axis=-1)
        o = torch.einsum("bhqk,bhkd->bhqd", p, v)
        return (lambda x, *d: x.permute(*d))(o, 0, 2, 1, 3).reshape(B, Sq, Hq * Dh) @ wo

    def _B_ref(x, w_gate, w_up, w_down):
        return (_gelu(x @ w_gate) * (x @ w_up)) @ w_down

    x = A_x
    xn = _layernorm(x, axis=-1)
    return x + _A_ref(xn, A_k_cache, A_v_cache, A_wq, A_wo) + _B_ref(xn, B_w_gate, B_w_up, B_w_down)
```

```python
import re, sys
def regs(tok):
    tok = tok.strip()
    tok = re.sub(r'^-|^abs\(|\)$|^\||\|$', '', tok)
    m = re.fullmatch(r'([vsa])(\d+)', tok)
    if m: return [(m.group(1), int(m.group(2)))]
    m = re.fullmatch(r'([vsa])\[(\d+):(\d+)\]', tok)
    if m: return [(m.group(1), i) for i in range(int(m.group(2)), int(m.group(3))+1)]
    if tok == 'vcc': return [('s','vcc')]
    if tok == 'exec': return [('s','exec')]
    if tok == 'm0': return [('s','m0')]
    return []
TRANS = ('v_exp_','v_log_','v_rcp_','v_rsq_','v_sqrt_','v_sin_','v_cos_')
class I:
    def __init__(s, line, n):
        s.line = line; s.n = n
        t = line.split(None, 1); s.op = t[0]
        rest = t[1] if len(t) > 1 else ''
        ops = [x.strip() for x in rest.split(',')] if rest else []
        s.mods = ''
        flat = []
        for o in ops:
            p = o.split()
            if p:
                flat.append(p[0]); s.mods += ' ' + ' '.join(p[1:])
        s.ops = flat
        op = s.op
        s.valu = op.startswith('v_') and not op.startswith('v_mfma')
        s.mfma = op.startswith('v_mfma')
        s.dpp = '_dpp' in op or 'row_' in s.mods or 'quad_perm' in rest
        s.trans = op.startswith(TRANS)
        s.dot = op.startswith('v_dot')
        s.perml = op.startswith('v_permlane')
        s.vmem = op.startswith(('buffer_','global_','flat_'))
        s.ds = op.startswith('ds_')
        s.lds_dma = s.vmem and (' lds' in (' '+rest) or 'load_lds' in op)
        s.salu = op.startswith('s_')
        s.w = []; s.r = []
        R = [regs(o) for o in flat]
        if s.valu or s.mfma:
            if op.startswith('v_cmp'):
                s.w = R[0]; s.r = sum(R[1:], [])
                if op.startswith('v_cmpx'): s.w = s.w + [('s','exec')]
            elif op.startswith(('v_readfirstlane','v_readlane')):
                s.w = R[0]; s.r = sum(R[1:], [])
            elif s.perml and 'swap' in op:
                s.w = R[0]+R[1]; s.r = R[0]+R[1]
            elif op.startswith(('v_add_co','v_addc_co','v_sub_co')):
                s.w = R[0]+R[1]; s.r = sum(R[2:], [])
            else:
                s.w = R[0]; s.r = sum(R[1:], [])
                if op.startswith(('v_fmac','v_dot2c','v_writelane')) or s.dpp or 'sdwa' in op: s.r += R[0]
            if s.mfma:
                s.A = R[1]; s.B = R[2]; s.C = R[3]
                s.passes = 8 if '32x32' in op else 4
        elif s.vmem:
            if 'store' in op or ('atomic' in op):
                s.r = sum(R, []);
                if 'atomic' in op and 'sc0' in s.mods: s.w = R[0]
                s.sdata = R[0] if op.startswith('buffer_') else R[1]
            elif s.lds_dma:
                s.r = sum(R, []) + [('s','m0')]
            else:
                s.w = R[0]; s.r = sum(R[1:], [])
        elif s.ds:
            if 'write' in op: s.r = sum(R, [])
            else: s.w = R[0]; s.r = sum(R[1:], [])
        elif s.salu:
            if op.startswith(('s_cmp','s_cbranch','s_branch','s_waitcnt','s_nop','s_barrier','s_endpgm','s_sleep','s_setprio')):
                s.r = sum(R, [])
            else:
                s.w = R[0] if R else []; s.r = sum(R[1:], [])
                if 'saveexec' in op: s.w = s.w + [('s','exec')]
        s.states = 1
        if op == 's_nop': s.states = int(flat[0], 0) + 1
def need(p, c):
    n = 0
    pw = set(p.w); cr = set(c.r); cw = set(c.w)
    vw = {x for x in pw if x[0] in 'va'}; sw = {x for x in pw if x[0]=='s'}
    if p.valu:
        if c.valu and c.dpp and (vw & set(regs(c.ops[1]))): n = max(n, 2)
        if c.perml and (vw & cr): n = max(n, 2)
        if c.mfma and (vw & cr): n = max(n, 3 if p.dot else 2)
        if c.op.startswith(('v_readfirstlane','v_readlane')) and (vw & cr): n = max(n, 1)
        if p.trans and (c.valu or c.mfma) and not c.trans and (vw & cr): n = max(n, 1)
        if p.dot and (vw & (cr|cw)):
            if c.op.replace('_e32','').replace('_e64','') == p.op.replace('_e32','').replace('_e64',''):
                srcab = set(regs(c.ops[1])+regs(c.ops[2]))
                if vw & srcab: n = max(n, 3)
            else: n = max(n, 3)
        if sw:
            if c.vmem and (sw & cr): n = max(n, 5)
            if c.valu and (sw & cr): n = max(n, 4 if c.op.startswith(('v_readlane','v_writelane')) else 2)
            if ('s','exec') in sw:
                if c.dpp: n = max(n,5)
                if c.mfma or c.perml or c.op.startswith(('v_readlane','v_readfirstlane')): n = max(n,4)
        if ('sdwa' in p.op or 'op_sel' in p.mods) and c.valu and (vw & cr): n = max(n,1)
    if p.mfma:
        k = {4:(0,6,8,8,3), 8:(0,10,12,12,7)}[p.passes]
        if c.mfma:
            if vw & set(c.C):
                if not (list(p.w) == list(c.C) and p.op == c.op): n = max(n, k[1])
            if vw & (set(c.A)|set(c.B)): n = max(n, k[2])
            if (vw & cw) and not (vw & set(c.C)): n = max(n, k[1])
        elif (c.valu or c.vmem or c.ds) and (vw & (cr|cw)): n = max(n, k[3])
        if c.valu and (set(p.C) & cw): n = max(n, k[4])
    if p.salu and ('s','m0') in pw and c.lds_dma: n = max(n, 1)
    if p.vmem and hasattr(p,'sdata') and len(p.sdata) >= 3 and (set(p.sdata) & cw): n = max(n, 2 if c.valu else 1)
    return n
def check(text):
    ins = []; labels = {}
    intext = True
    for n, raw in enumerate(text.splitlines(), 1):
        l = raw.split(';')[0].strip()
        if not l: continue
        if l.startswith('.section'): break
        if l.startswith('.'): continue
        m = re.match(r'^(\w+):\s*(.*)$', l)
        if m:
            labels[m.group(1)] = len(ins); l = m.group(2)
            if not l: continue
        ins.append(I(l, n))
    errs = []
    def succ(i):
        x = ins[i]
        out = []
        if x.op == 's_endpgm': return out
        if x.op.startswith(('s_branch','s_cbranch')):
            t = labels.get(x.ops[0])
            if t is not None and t < len(ins): out.append(t)
            if x.op == 's_branch': return out
        if i+1 < len(ins): out.append(i+1)
        return out
    for i, p in enumerate(ins):
        if not (p.valu or p.mfma or p.salu or p.vmem): continue
        stack = [(j, 0) for j in succ(i)]; seen = set()
        while stack:
            j, d = stack.pop()
            if (j,d) in seen or d > 12: continue
            seen.add((j,d))
            c = ins[j]
            k = need(p, c)
            if k > d: errs.append(f"line {p.n} [{p.line}] -> line {c.n} [{c.line}] needs {k} has {d}")
            for t in succ(j): stack.append((t, d + c.states))
    return sorted(set(errs))
if __name__ == "__main__":
    e = check(open(sys.argv[1]).read())
    print("\n".join(e) if e else "hazards: none")
```

```python
import sys, math
NAME = "parallel_sum__sliding_block_cached__geglu_ffn__decode"

HEADER = """; Kernarg layout for this problem (96 bytes, ptrs only, base s[0:1]):
"""

SLOT = 6144
REG = 6 * SLOT
S0 = 2 * SLOT
XN = 4 * REG
XNS = 1344
RED = XN + 4 * XNS
QS = RED + 6144
OA = QS + 4 * 384
OAS = 144
FIN = OA + 4 * OAS
LDS_TOTAL = FIN + 512

WS_EPOCH = 0
WS_CTR = 0x1000
WS_QX = 0x10000
WS_OP = 0x100000
WS_PO = 0x400000
WS_SIZE = 0x800000
STAMP_OFF = 0x4000000

DPP = "row_mask:0xf bank_mask:0xf"
SPIN = 400000


def gen(stamps=False, dyn=False, nstat=(23, 26, 19), pollat=4, debug=False):
    L = []
    def e(s): L.append("    " + s)
    def lab(s): L.append(s + ":")
    def nop(n):
        if n > 0: e(f"s_nop {n-1}")
    nst = [0]
    def stamp(i):
        if stamps: e(f"s_memrealtime s[{84+2*i}:{85+2*i}]")

    sW, sH, sS, sRole, sT = 3, 4, 5, 6, 7
    rK, rV, rWS, rW1, rW2, rWO, rWD, rX, rOUT = 8, 12, 16, 20, 24, 28, 32, 36, 40
    sBase, sWp, sRp, sEnd = 44, 45, 46, 47
    sWrap, sNext, sRem, sAhead = 72, 73, 74, 75
    t0, t1, t2, t3 = 76, 77, 78, 79
    sScale, sLog2e, sFF, sSpin = 80, 81, 82, 83
    sCtr = 48
    sDynBase = 49
    def srd(r): return f"s[{r}:{r+3}]"
    vLane, vLin, vRow8, vAd, vM, vMl, vL = 1, 2, 3, 4, 5, 6, 7
    vMk, vQ, vAcc, vK, vV, vP, vT = 8, 12, 24, 36, 48, 60, 64
    vTg, vWoOff, vTrA = 72, 76, 84
    vB, vD = 88, 148
    vOpSt1, vOpSt2, vOpLd, vOaW, vOaR, vPoSt, vPoLd, vXf, vClaim, vZero = 188, 189, 190, 191, 192, 193, 194, 195, 196, 197
    vFinW, vOutOff = 198, 199
    NV = 200

    L.append(HEADER.rstrip())
    L.append(f"; @launch grid=(256,1,1) block=(256,1,1) lds={LDS_TOTAL}")
    L.append('.amdgcn_target "amdgcn-amd-amdhsa--gfx950"')
    L.append(".text"); L.append(f".globl {NAME}_kernel"); L.append(".p2align 8")
    L.append(f".type {NAME}_kernel,@function"); lab(f"{NAME}_kernel")

    e("s_cmp_ge_u32 s2, 256"); e("s_cbranch_scc1 L_end")
    e("s_load_dwordx16 s[48:63], s[0:1], 0")
    e("s_load_dwordx8 s[64:71], s[0:1], 64")
    stamp(0)
    e("v_lshrrev_b32 v1, 6, v0")
    e(f"s_lshr_b32 s{sH}, s2, 3")
    e(f"v_readfirstlane_b32 s{sW}, v1")
    e(f"v_and_b32 v{vLane}, 63, v0")
    e(f"s_and_b32 s{sS}, s2, 7")
    e(f"s_add_u32 s{sRole}, s{sS}, s{sH}"); e(f"s_and_b32 s{sRole}, s{sRole}, 7")
    e(f"v_lshlrev_b32 v{vLin}, 4, v{vLane}")
    e(f"s_lshl_b32 s{t0}, s{sW}, 5"); e(f"s_add_u32 s{t0}, s{t0}, s{sH}")
    e(f"s_mul_i32 s{t1}, s{t0}, 3145728"); e(f"s_add_u32 s{t1}, s{t1}, {6144*384}")
    e(f"s_mul_i32 s{sBase}, s{sW}, {REG}")
    e(f"s_add_u32 s{sEnd}, s{sBase}, {REG}"); e(f"s_add_u32 s{sWrap}, s{sBase}, {S0}")
    e(f"s_mov_b32 s{sWp}, s{sBase}"); e(f"s_mov_b32 s{sRp}, s{sBase}")
    if dyn:
        cq, cn, cf = nstat
    else:
        cq, cn, cf = 31, 34, 27
    cnt = [cq, cq, cq, cn, cn, cn, cf, cn]
    st = [sum(cnt[:i]) for i in range(8)]
    tot_static = sum(cnt)
    pk = lambda a: sum(v << (8*i) for i, v in enumerate(a))
    cs, ss = pk(cnt), pk(st)
    e(f"s_lshl_b32 s{t2}, s{sRole}, 3")
    e(f"s_mov_b32 s{sScale}, 0x{ss & 0xffffffff:x}"); e(f"s_mov_b32 s{sLog2e}, 0x{ss >> 32:x}")
    e(f"s_lshr_b64 s[{sScale}:{sLog2e}], s[{sScale}:{sLog2e}], s{t2}"); e(f"s_and_b32 s{sNext}, s{sScale}, 0xff")
    e(f"s_mul_i32 s{sNext}, s{sNext}, 3072")
    e(f"s_mov_b32 s{sScale}, 0x{cs & 0xffffffff:x}"); e(f"s_mov_b32 s{sLog2e}, 0x{cs >> 32:x}")
    e(f"s_lshr_b64 s[{sScale}:{sLog2e}], s[{sScale}:{sLog2e}], s{t2}"); e(f"s_and_b32 s{sRem}, s{sScale}, 0xff")
    for r in (rK, rV, rWS, rW1, rW2, rWO, rWD, rX, rOUT): e(f"s_mov_b32 s{r+3}, 0x20000")
    e(f"s_mov_b32 s{rK+2}, 786432"); e(f"s_mov_b32 s{rV+2}, 786432")
    e(f"s_mov_b32 s{rWS+2}, 0x{(STAMP_OFF + 0x100000) if stamps else WS_SIZE:x}")
    e(f"s_mov_b32 s{rW2+2}, {640*1536*2}"); e(f"s_mov_b32 s{rWO+2}, {6144*640*2}"); e(f"s_mov_b32 s{rWD+2}, {1536*640*2}")
    e(f"s_mov_b32 s{rX+2}, 5120"); e(f"s_mov_b32 s{rOUT+2}, 5120")
    e("s_waitcnt lgkmcnt(0)")
    e(f"s_load_dword s{sT}, s[70:71], {WS_EPOCH}")
    if stamps:
        for i in range(1, 8): e(f"s_mov_b64 s[{84+2*i}:{85+2*i}], s[84:85]")
    e(f"s_add_u32 s{rK}, s50, s{t1}"); e(f"s_addc_u32 s{rK+1}, s51, 0")
    e(f"s_add_u32 s{rV}, s52, s{t1}"); e(f"s_addc_u32 s{rV+1}, s53, 0")
    e(f"s_mov_b32 s{rX}, s48"); e(f"s_mov_b32 s{rX+1}, s49")
    e(f"s_cmp_eq_u32 s{sRole}, 6")
    e(f"s_cselect_b32 s{rW1}, s60, s54"); e(f"s_cselect_b32 s{rW1+1}, s61, s55")
    e(f"s_cselect_b32 s{rW1+2}, s{rW2+2}, s{rWO+2}")
    e(f"s_mov_b32 s{rW2}, s62"); e(f"s_mov_b32 s{rW2+1}, s63")
    e(f"s_mov_b32 s{rWO}, s56"); e(f"s_mov_b32 s{rWO+1}, s57")
    e(f"s_mov_b32 s{rWD}, s64"); e(f"s_mov_b32 s{rWD+1}, s65")
    e(f"s_mov_b32 s{rOUT}, s66"); e(f"s_mov_b32 s{rOUT+1}, s67")
    e(f"s_mov_b32 s{rWS}, s70"); e(f"s_mov_b32 s{rWS+1}, s71")
    e(f"s_lshl_b32 s{sCtr}, s{t0}, 7"); e(f"s_add_u32 s{sCtr}, s{sCtr}, 0x{WS_CTR:x}")

    def issue_chunk():
        e(f"s_mov_b32 m0, s{sWp}")
        e(f"s_add_u32 s{t3}, s{sWp}, 3072")
        for j in range(3): e(f"buffer_load_dwordx4 v{vLin}, {srd(rK)}, s{sNext} offen offset:{j*1024} nt lds")
        e(f"s_mov_b32 m0, s{t3}")
        e(f"s_add_u32 s{sWp}, s{sWp}, {SLOT}")
        for j in range(3): e(f"buffer_load_dwordx4 v{vLin}, {srd(rV)}, s{sNext} offen offset:{j*1024} nt lds")
        e(f"s_cmp_eq_u32 s{sWp}, s{sEnd}"); e(f"s_cselect_b32 s{sWp}, s{sWrap}, s{sWp}")
    def next_static():
        e(f"s_add_u32 s{sNext}, s{sNext}, 3072"); e(f"s_sub_u32 s{sRem}, s{sRem}, 1")

    e(f"s_cmp_lt_u32 s{sRole}, 3"); e("s_cbranch_scc1 L_prod")
    e(f"s_cmp_eq_u32 s{sRole}, 6"); e("s_cbranch_scc1 L_prod")
    issue_chunk(); next_static(); issue_chunk(); next_static()
    e("s_waitcnt lgkmcnt(0)")
    e(f"s_add_u32 s{sT}, s{sT}, 0x9e3779b9")
    e("s_branch L_head")

    lab("L_prod")
    e(f"s_mul_i32 s{t0}, s{sW}, 1280")
    e(f"v_lshlrev_b32 v{vT}, 2, v{vLane}")
    e(f"buffer_load_dwordx4 v[{vK}:{vK+3}], v{vLin}, {srd(rX)}, s{t0} offen")
    e(f"buffer_load_dword v{vK+4}, v{vT}, {srd(rX)}, s{t0} offen offset:1024")
    e(f"s_cmp_eq_u32 s{sRole}, 6"); e("s_cbranch_scc1 L_f_dma")
    e(f"v_lshrrev_b32 v{vT+1}, 3, v{vLane}")
    e(f"v_and_b32 v{vT+2}, 6, v{vT+1}")
    e(f"v_and_b32 v{vT+3}, 7, v{vLane}")
    e(f"v_xor_b32 v{vT+2}, v{vT+2}, v{vT+3}")
    e(f"v_lshlrev_b32 v{vT+2}, 4, v{vT+2}")
    e(f"v_mul_u32_u24 v{vT+1}, 12288, v{vT+1}")
    e(f"v_add_u32 v{vT+1}, v{vT+1}, v{vT+2}")
    e(f"s_mul_i32 s{t0}, s{sW}, {160*12288}"); e(f"s_mul_i32 s{t1}, s{sH}, 384"); e(f"s_add_u32 s{t0}, s{t0}, s{t1}")
    e(f"s_lshl_b32 s{t1}, s{sRole}, 7"); e(f"s_add_u32 s{t0}, s{t0}, s{t1}")
    e(f"s_mov_b32 s{t1}, s{sWrap}")
    e(f"s_add_u32 s{t2}, s{sWrap}, {20*1024}")
    lab("L_q_dma")
    for i in range(4):
        e(f"s_mov_b32 m0, s{t1}")
        e(f"s_add_u32 s{t1}, s{t1}, 1024")
        e(f"buffer_load_dwordx4 v{vT+1}, {srd(rW1)}, s{t0} offen nt lds")
        e(f"s_add_u32 s{t0}, s{t0}, {8*12288}")
    e(f"s_cmp_lt_u32 s{t1}, s{t2}"); e("s_cbranch_scc1 L_q_dma")
    e(f"v_mov_b32 v{vZero}, 0")
    if dyn:
        e(f"s_cmp_eq_u32 s{sRole}, 0"); e(f"s_cselect_b32 s{t0}, s{sCtr}, 0x7ffffff0")
        e(f"buffer_store_dword v{vZero}, v{vZero}, {srd(rWS)}, s{t0} offen sc1")
    nctr = 1 if dyn else 0
    issue_chunk(); next_static(); issue_chunk(); next_static()
    e(f"s_waitcnt vmcnt({20 + nctr + 12})")
    e("s_branch L_ln")
    lab("L_f_dma")
    for i in range(3):
        e(f"v_add_u32 v{vT+4}, {64*i}, v{vLane}")
        e(f"v_mul_u32_u24 v{vT+5}, 43691, v{vT+4}"); e(f"v_lshrrev_b32 v{vT+5}, 18, v{vT+5}")
        e(f"v_mul_u32_u24 v{vT+6}, 6, v{vT+5}"); e(f"v_sub_u32 v{vT+6}, v{vT+4}, v{vT+6}")
        e(f"v_mul_u32_u24 v{vT+5}, 3072, v{vT+5}"); e(f"v_lshl_add_u32 v{vT+1+i}, v{vT+6}, 4, v{vT+5}")
    e(f"s_mul_i32 s{t0}, s{sW}, {160*3072}"); e(f"s_mul_i32 s{t1}, s{sH}, 96"); e(f"s_add_u32 s{t0}, s{t0}, s{t1}")
    e(f"s_mov_b32 s{t1}, s{sBase}")
    e(f"s_add_u32 s{t2}, s{sBase}, 15360")
    lab("L_f_dma_loop")
    for i in range(3):
        e(f"s_mov_b32 m0, s{t1}")
        e(f"s_add_u32 s{t3}, s{t1}, 15360")
        e(f"buffer_load_dwordx4 v{vT+1+i}, {srd(rW1)}, s{t0} offen nt lds")
        e(f"s_mov_b32 m0, s{t3}")
        e(f"s_add_u32 s{t1}, s{t1}, 1024")
        e(f"buffer_load_dwordx4 v{vT+1+i}, {srd(rW2)}, s{t0} offen nt lds")
    e(f"s_add_u32 s{t0}, s{t0}, {32*3072}")
    e(f"s_cmp_lt_u32 s{t1}, s{t2}"); e("s_cbranch_scc1 L_f_dma_loop")
    e("s_waitcnt vmcnt(30)")

    lab("L_ln")
    ev = vV
    def allreduce16(r, op):
        for d in ("quad_perm:[1,0,3,2]", "quad_perm:[2,3,0,1]", "row_half_mirror", "row_mirror"):
            nop(2); e(f"{op}_dpp v{r}, v{r}, v{r} {d} {DPP}")
    def allreduce_rows(r, tmp, op):
        for p in ("v_permlane16_swap_b32", "v_permlane32_swap_b32"):
            e(f"v_mov_b32 v{tmp}, v{r}"); nop(2); e(f"{p} v{r}, v{tmp}"); e(f"{op} v{r}, v{r}, v{tmp}")
    for i in range(5):
        e(f"v_lshlrev_b32 v{ev+2*i}, 16, v{vK+i}"); e(f"v_and_b32 v{ev+2*i+1}, 0xffff0000, v{vK+i}")
    e(f"v_add_f32 v{vT}, v{ev}, v{ev+1}")
    for i in range(2, 10): e(f"v_add_f32 v{vT}, v{vT}, v{ev+i}")
    allreduce16(vT, "v_add_f32"); allreduce_rows(vT, vT+1, "v_add_f32")
    e(f"v_mul_f32 v{vT}, 0x{f2u(1.0/640):x}, v{vT}")
    e(f"v_sub_f32 v{vT+2}, v{ev}, v{vT}"); e(f"v_mul_f32 v{vT+3}, v{vT+2}, v{vT+2}")
    for i in range(1, 10):
        e(f"v_sub_f32 v{vT+2}, v{ev+i}, v{vT}"); e(f"v_fmac_f32 v{vT+3}, v{vT+2}, v{vT+2}")
    allreduce16(vT+3, "v_add_f32"); allreduce_rows(vT+3, vT+1, "v_add_f32")
    e(f"v_mul_f32 v{vT+3}, 0x{f2u(1.0/640):x}, v{vT+3}")
    e(f"v_cvt_pk_bf16_f32 v{vT+1}, v{vT}, v{vT+3}")
    e(f"v_lshlrev_b32 v{vT}, 16, v{vT+1}")
    e(f"v_and_b32 v{vT+3}, 0xffff0000, v{vT+1}")
    e(f"v_add_f32 v{vT+3}, 0x{f2u(1e-5):x}, v{vT+3}")
    e(f"v_cvt_pk_bf16_f32 v{vT+3}, v{vT+3}, v{vT+3}"); e(f"v_and_b32 v{vT+3}, 0xffff0000, v{vT+3}")
    e(f"v_sqrt_f32 v{vT+3}, v{vT+3}"); nop(1)
    e(f"v_cvt_pk_bf16_f32 v{vT+3}, v{vT+3}, v{vT+3}"); e(f"v_and_b32 v{vT+3}, 0xffff0000, v{vT+3}")
    e(f"v_rcp_f32 v{vT+3}, v{vT+3}")
    for i in range(5):
        a, b = ev+2*i, ev+2*i+1
        e(f"v_sub_f32 v{a}, v{a}, v{vT}"); e(f"v_sub_f32 v{b}, v{b}, v{vT}")
        e(f"v_cvt_pk_bf16_f32 v{vT+1}, v{a}, v{b}")
        e(f"v_lshlrev_b32 v{a}, 16, v{vT+1}"); e(f"v_and_b32 v{b}, 0xffff0000, v{vT+1}")
        e(f"v_mul_f32 v{a}, v{a}, v{vT+3}"); e(f"v_mul_f32 v{b}, v{b}, v{vT+3}")
        e(f"v_cvt_pk_bf16_f32 v{vK+i}, v{a}, v{b}")
    e(f"s_mul_i32 s{t0}, s{sW}, {XNS}"); e(f"s_add_u32 s{t0}, s{t0}, {XN}")
    e(f"v_add_u32 v{vT}, s{t0}, v{vLin}")
    e(f"v_lshl_add_u32 v{vT+1}, v{vLane}, 2, s{t0}")
    e(f"ds_write_b128 v{vT}, v[{vK}:{vK+3}]")
    e(f"ds_write_b32 v{vT+1}, v{vK+4} offset:1024")
    e(f"v_and_b32 v{vT+2}, 3, v{vLane}"); e(f"v_mul_u32_u24 v{vT+2}, {XNS}, v{vT+2}")
    e(f"v_lshrrev_b32 v{vT+3}, 4, v{vLane}")
    e(f"v_lshl_add_u32 v{vT+2}, v{vT+3}, 3, v{vT+2}")
    e(f"s_mul_i32 s{t0}, s{sW}, 320"); e(f"s_add_u32 s{t0}, s{t0}, {XN}")
    e(f"v_add_u32 v{vT+2}, s{t0}, v{vT+2}")
    e("s_waitcnt lgkmcnt(0)")
    e(f"s_add_u32 s{sT}, s{sT}, 0x9e3779b9")
    e("s_barrier")
    vA = vK
    for ks in range(5):
        e(f"ds_read2_b64 v[{vA+4*ks}:{vA+4*ks+3}], v{vT+2} offset0:{ks*8} offset1:{ks*8+4}")
    e(f"v_lshrrev_b32 v{vT+4}, 2, v{vLane}")
    e(f"v_and_b32 v{vT+5}, 3, v{vLane}"); e(f"v_lshlrev_b32 v{vT+5}, 3, v{vT+5}")
    e(f"s_cmp_eq_u32 s{sRole}, 6"); e("s_cbranch_scc1 L_f_mm")

    e(f"v_lshl_add_u32 v{vT+5}, v{vT+4}, 7, v{vT+5}")
    e(f"v_add_u32 v{vT+5}, s{sWrap}, v{vT+5}")
    e(f"v_lshrrev_b32 v{vT+4}, 1, v{vT+4}"); e(f"v_and_b32 v{vT+4}, 3, v{vT+4}")
    vTa = vP
    for t in range(4):
        e(f"v_xor_b32 v{vT+6}, {t}, v{vT+4}"); e(f"v_lshl_add_u32 v{vTa+t}, v{vT+6}, 5, v{vT+5}")
    for ks in range(5):
        e(f"s_waitcnt vmcnt({16 - 4*ks + nctr + 12})")
        bb = vB + (ks % 2) * 16
        for t in range(4):
            e(f"ds_read_b64_tr_b16 v[{bb+4*t}:{bb+4*t+1}], v{vTa+t} offset:{ks*4096}")
            e(f"ds_read_b64_tr_b16 v[{bb+4*t+2}:{bb+4*t+3}], v{vTa+t} offset:{ks*4096+2048}")
        for t in range(4):
            e(f"s_waitcnt lgkmcnt({6-2*t})")
            c = "0" if ks == 0 else f"v[{vD+4*t}:{vD+4*t+3}]"
            e(f"v_mfma_f32_16x16x32_bf16 v[{vD+4*t}:{vD+4*t+3}], v[{vA+4*ks}:{vA+4*ks+3}], v[{bb+4*t}:{bb+4*t+3}], {c}")
    e(f"s_lshl_b32 s{t0}, s{sW}, 10"); e(f"s_add_u32 s{t0}, s{t0}, {RED}")
    e(f"v_add_u32 v{vT}, s{t0}, v{vLin}")
    e(f"s_lshl_b32 s{t0}, s{sW}, 2"); e(f"s_add_u32 s{t0}, s{t0}, {RED}")
    e(f"v_and_b32 v{vT+1}, 31, v{vLane}")
    e(f"v_lshl_add_u32 v{vT+2}, v{vT+1}, 5, s{t0}")
    e(f"v_lshlrev_b32 v{vT+1}, 3, v{vT+1}")
    e("s_mov_b64 exec, 0xffff")
    for t in range(4): e(f"ds_write_b128 v{vT}, v[{vD+4*t}:{vD+4*t+3}] offset:{t*256}")
    e("s_mov_b64 exec, -1")
    e("s_waitcnt lgkmcnt(0)")
    if dyn: e("s_waitcnt vmcnt(12)")
    e("s_barrier")
    for w in range(4):
        e(f"ds_read_b32 v{vK+2*w}, v{vT+2} offset:{w*1024}"); e(f"ds_read_b32 v{vK+2*w+1}, v{vT+2} offset:{w*1024+16}")
    e(f"s_lshl_b32 s{t0}, s{sH}, 2"); e(f"s_add_u32 s{t0}, s{t0}, s{sW}"); e(f"s_mul_i32 s{t0}, s{t0}, 768")
    e(f"s_lshl_b32 s{t1}, s{sRole}, 8"); e(f"s_add_u32 s{t0}, s{t0}, s{t1}"); e(f"s_add_u32 s{t0}, s{t0}, 0x{WS_QX:x}")
    e(f"v_mov_b32 v{vT+5}, s{sT}")
    e("s_waitcnt lgkmcnt(0)")
    for i in range(2):
        e(f"v_add_f32 v{vK+i}, v{vK+i}, v{vK+2+i}"); e(f"v_add_f32 v{vK+4+i}, v{vK+4+i}, v{vK+6+i}")
    for i in range(2): e(f"v_add_f32 v{vK+i}, v{vK+i}, v{vK+4+i}")
    e(f"v_cvt_pk_bf16_f32 v{vT+4}, v{vK}, v{vK+1}")
    e("s_mov_b64 exec, 0xffffffff")
    e(f"buffer_store_dwordx2 v[{vT+4}:{vT+5}], v{vT+1}, {srd(rWS)}, s{t0} offen sc1")
    e("s_mov_b64 exec, -1")
    stamp(1)
    e("s_branch L_head")

    lab("L_f_mm")
    e(f"v_mul_u32_u24 v{vT+6}, 96, v{vT+4}"); e(f"v_add3_u32 v{vT+6}, v{vT+6}, v{vT+5}, s{sBase}")
    for ks in range(5):
        e(f"s_waitcnt vmcnt({24 - 6*ks})")
        bb = vB + (ks % 2) * 24
        for t in range(6):
            off = (t // 3) * 15360 + ks * 3072 + (t % 3) * 32
            e(f"ds_read_b64_tr_b16 v[{bb+4*t}:{bb+4*t+1}], v{vT+6} offset:{off}")
            e(f"ds_read_b64_tr_b16 v[{bb+4*t+2}:{bb+4*t+3}], v{vT+6} offset:{off+1536}")
        for t in range(6):
            e(f"s_waitcnt lgkmcnt({10-2*t})")
            c = "0" if ks == 0 else f"v[{vD+4*t}:{vD+4*t+3}]"
            e(f"v_mfma_f32_16x16x32_bf16 v[{vD+4*t}:{vD+4*t+3}], v[{vA+4*ks}:{vA+4*ks+3}], v[{bb+4*t}:{bb+4*t+3}], {c}")
    e(f"s_mul_i32 s{t0}, s{sH}, {48*1280}"); e(f"s_mul_i32 s{t1}, s{sW}, {12*1280}"); e(f"s_add_u32 s{t0}, s{t0}, s{t1}")
    e(f"s_mov_b32 s{t1}, s{sWrap}")
    for i in range(15):
        if i % 4 == 0:
            e(f"s_mov_b32 m0, s{t1}"); e(f"s_add_u32 s{t1}, s{t1}, 4096")
        e(f"buffer_load_dwordx4 v{vLin}, {srd(rWD)}, s{t0} offen offset:{(i%4)*1024} nt lds")
        if i % 4 == 3: e(f"s_add_u32 s{t0}, s{t0}, 4096")
    issue_chunk(); next_static(); issue_chunk(); next_static()
    e(f"s_mul_i32 s{t0}, s{sW}, 1536"); e(f"s_add_u32 s{t0}, s{t0}, {RED}")
    e(f"v_add_u32 v{vT}, s{t0}, v{vLin}")
    e(f"s_lshl_b32 s{t0}, s{sW}, 2"); e(f"s_add_u32 s{t0}, s{t0}, {RED}")
    e(f"v_add_u32 v{vT+2}, s{t0}, v{vLin}")
    e("s_mov_b64 exec, 0xffff")
    for t in range(6): e(f"ds_write_b128 v{vT}, v[{vD+4*t}:{vD+4*t+3}] offset:{t*256}")
    e("s_mov_b64 exec, -1")
    e("s_waitcnt lgkmcnt(0)"); e("s_barrier")
    for w in range(4):
        e(f"ds_read_b32 v{vK+2*w}, v{vT+2} offset:{w*1536}"); e(f"ds_read_b32 v{vK+2*w+1}, v{vT+2} offset:{w*1536+768}")
    e(f"s_mul_i32 s{t0}, s{sW}, {OAS}"); e(f"s_add_u32 s{t0}, s{t0}, {OA}")
    e(f"v_lshl_add_u32 v{vT+1}, v{vLane}, 1, s{t0}")
    e("s_waitcnt lgkmcnt(0)")
    for i in range(2):
        e(f"v_add_f32 v{vK+i}, v{vK+i}, v{vK+2+i}"); e(f"v_add_f32 v{vK+4+i}, v{vK+4+i}, v{vK+6+i}")
    for i in range(2): e(f"v_add_f32 v{vK+i}, v{vK+i}, v{vK+4+i}")
    e(f"v_cvt_pk_bf16_f32 v{vK+2}, v{vK}, v{vK+1}")
    e(f"v_lshlrev_b32 v{vK}, 16, v{vK+2}"); e(f"v_and_b32 v{vK+1}, 0xffff0000, v{vK+2}")
    cg = -2.0 * math.sqrt(2.0 / math.pi) * math.log2(math.e)
    e(f"v_mul_f32 v{vK+2}, v{vK}, v{vK}")
    e(f"v_mul_f32 v{vK+2}, v{vK+2}, v{vK}")
    e(f"v_mov_b32 v{vK+3}, v{vK}")
    e(f"v_fmac_f32 v{vK+3}, 0x{f2u(0.044715):x}, v{vK+2}")
    e(f"v_mul_f32 v{vK+3}, 0x{f2u(cg):x}, v{vK+3}")
    e(f"v_exp_f32 v{vK+3}, v{vK+3}"); nop(1)
    e(f"v_add_f32 v{vK+3}, 1.0, v{vK+3}")
    e(f"v_rcp_f32 v{vK+3}, v{vK+3}"); nop(1)
    e(f"v_mul_f32 v{vK+3}, v{vK}, v{vK+3}")
    e(f"v_cvt_pk_bf16_f32 v{vK+3}, v{vK+3}, v{vK+3}"); e(f"v_and_b32 v{vK+3}, 0xffff0000, v{vK+3}")
    e(f"v_mul_f32 v{vK+3}, v{vK+3}, v{vK+1}")
    e(f"v_cvt_pk_bf16_f32 v{vK+3}, v{vK+3}, v{vK+3}")
    e(f"ds_write_b16 v{vT+1}, v{vK+3}")

    def gemv2_addrs(rowstride, regoff, tiles_per_wave):
        e(f"v_lshrrev_b32 v{vT+2}, 4, v{vLane}")
        e(f"v_bfe_u32 v{vT+3}, v{vLane}, 2, 2")
        e(f"v_mul_u32_u24 v{vT+3}, {rowstride}, v{vT+3}")
        e(f"v_and_b32 v{vT+4}, 3, v{vLane}")
        e(f"v_lshl_add_u32 v{vT+3}, v{vT+4}, 3, v{vT+3}")
        e(f"s_mul_i32 s{t0}, s{sW}, {tiles_per_wave*32}"); e(f"s_add_u32 s{t0}, s{t0}, {regoff}")
        e(f"v_add_u32 v{vT+3}, s{t0}, v{vT+3}")
        for kb in range(3):
            e(f"v_add_u32 v{vT+4}, {4*kb}, v{vT+2}")
            e(f"v_mul_u32_u24 v{vT+5}, 43, v{vT+4}"); e(f"v_lshrrev_b32 v{vT+5}, 7, v{vT+5}")
            e(f"v_mul_u32_u24 v{vT+6}, 3, v{vT+5}"); e(f"v_sub_u32 v{vT+6}, v{vT+4}, v{vT+6}")
            e(f"v_mul_u32_u24 v{vT+5}, {REG}, v{vT+5}"); e(f"v_mul_u32_u24 v{vT+6}, {4*rowstride}, v{vT+6}")
            e(f"v_add3_u32 v{vTrA+kb}, v{vT+3}, v{vT+5}, v{vT+6}")
    def oa_read_addr():
        e(f"v_and_b32 v{vT+2}, 3, v{vLane}"); e(f"v_mul_u32_u24 v{vT+2}, {OAS}, v{vT+2}")
        e(f"v_lshrrev_b32 v{vT+3}, 4, v{vLane}")
        e(f"v_lshl_add_u32 v{vT+2}, v{vT+3}, 3, v{vT+2}")
        e(f"v_add_u32 v{vOaR}, {OA}, v{vT+2}")
    def tag_bytes():
        for i in range(4):
            e(f"s_bfe_u32 s{t0}, s{sT}, 0x{(8 << 16) | (8*i):x}"); e(f"v_mov_b32 v{vTg+i}, s{t0}")
        e(f"s_mov_b32 s{sFF}, 0xff")
    def gemv2_breads(nt):
        for t in range(nt):
            for kb in range(3):
                e(f"ds_read_b64_tr_b16 v[{vB+6*t+2*kb}:{vB+6*t+2*kb+1}], v{vTrA+kb} offset:{32*t}")
    def gemv2_mm(nt):
        for t in range(nt):
            e(f"v_mfma_f32_16x16x32_bf16 v[{vD+4*t}:{vD+4*t+3}], v[{vP}:{vP+3}], v[{vB+6*t}:{vB+6*t+3}], 0")
        for t in range(nt):
            e(f"v_mfma_f32_16x16x16_bf16 v[{vD+4*t}:{vD+4*t+3}], v[{vT}:{vT+1}], v[{vB+6*t+4}:{vB+6*t+5}], v[{vD+4*t}:{vD+4*t+3}]")
    def gemv2_store(nt, soff):
        e("s_mov_b64 exec, 0xffff")
        nop(max(0, 8 - nt))
        for t in range(nt):
            for i in range(4): e(f"v_bfi_b32 v{vD+4*t+i}, s{sFF}, v{vTg+i}, v{vD+4*t+i}")
            e(f"buffer_store_dwordx4 v[{vD+4*t}:{vD+4*t+3}], v{vLin}, {srd(rWS)}, s{soff} offen offset:{t*256} sc1")
        e("s_mov_b64 exec, -1")

    gemv2_addrs(1280, S0, 10)
    oa_read_addr()
    tag_bytes()
    e("s_waitcnt vmcnt(12) lgkmcnt(0)"); e("s_barrier")
    e(f"ds_read2_b64 v[{vP}:{vP+3}], v{vOaR} offset0:0 offset1:4")
    e(f"ds_read_b64 v[{vT}:{vT+1}], v{vOaR} offset:64")
    for t in range(10):
        for kb in range(3):
            e(f"ds_read_b64_tr_b16 v[{vB+6*t+2*kb}:{vB+6*t+2*kb+1}], v{vTrA+kb} offset:{32*t}")
        if t % 4 == 3: e("s_waitcnt lgkmcnt(0)")
    e(f"s_lshr_b32 s{t0}, s{sW}, 1"); e(f"s_mul_i32 s{t0}, s{t0}, 160"); e(f"s_add_u32 s{t0}, s{t0}, s{sH}"); e(f"s_add_u32 s{t0}, s{t0}, 128")
    e(f"s_mul_i32 s{t0}, s{t0}, 5120"); e(f"s_and_b32 s{t1}, s{sW}, 1"); e(f"s_mul_i32 s{t1}, s{t1}, 2560")
    e(f"s_add_u32 s{t0}, s{t0}, s{t1}"); e(f"s_add_u32 s{t0}, s{t0}, 0x{WS_PO:x}")
    e("s_waitcnt lgkmcnt(0)"); e("s_barrier")
    gemv2_mm(10)
    gemv2_store(10, t0)
    stamp(1)

    lab("L_head")
    e(f"v_lshrrev_b32 v{vT}, 3, v{vLane}"); e(f"v_mul_u32_u24 v{vT}, 384, v{vT}")
    e(f"v_and_b32 v{vT+1}, 7, v{vLane}")
    e(f"v_lshl_add_u32 v{vRow8}, v{vT+1}, 4, v{vT}")
    e(f"v_and_b32 v{vT+2}, 1, v{vLane}"); e(f"v_lshlrev_b32 v{vT+2}, 4, v{vT+2}")
    e(f"v_mov_b32 v{vT+3}, 0xffff"); e(f"v_lshlrev_b32 v{vT+3}, v{vT+2}, v{vT+3}")
    e(f"v_lshrrev_b32 v{vT+2}, 1, v{vT+1}")
    for d in range(4):
        e(f"v_cmp_eq_u32 vcc, {d}, v{vT+2}"); nop(2); e(f"v_cndmask_b32 v{vMk+d}, 0, v{vT+3}, vcc")
    for i in range(12): e(f"v_mov_b32 v{vAcc+i}, 0")
    e(f"v_mov_b32 v{vM}, 0xff000000"); e(f"v_mov_b32 v{vMl}, 0xff000000"); e(f"v_mov_b32 v{vL}, 0")
    e(f"s_mov_b32 s{sScale}, 0x{f2u(192 ** -0.5):x}"); e(f"s_mov_b32 s{sLog2e}, 0x{f2u(math.log2(math.e)):x}")
    e("s_waitcnt vmcnt(6)"); issue_chunk(); next_static()
    tag_bytes()
    gemv2_addrs(640, 0, 5)
    oa_read_addr()
    for i in range(8):
        e(f"v_add_u32 v{vT+4}, {64*i}, v{vLane}")
        e(f"v_mul_u32_u24 v{vT+5}, 52429, v{vT+4}"); e(f"v_lshrrev_b32 v{vT+5}, 21, v{vT+5}")
        e(f"v_mul_u32_u24 v{vT+6}, 40, v{vT+5}"); e(f"v_sub_u32 v{vT+6}, v{vT+4}, v{vT+6}")
        e(f"v_mul_u32_u24 v{vT+5}, 1280, v{vT+5}"); e(f"v_lshl_add_u32 v{vWoOff+i}, v{vT+6}, 4, v{vT+5}")
    e(f"v_cmp_gt_u32 vcc, 32, v{vLane}"); e(f"v_mov_b32 v{vT+4}, 0x7ffffff0"); nop(1)
    e(f"v_cndmask_b32 v{vWoOff+7}, v{vT+4}, v{vWoOff+7}, vcc")
    e("s_waitcnt vmcnt(6)"); issue_chunk(); next_static()
    e(f"v_and_b32 v{vT}, 7, v{vLane}"); e(f"v_lshlrev_b32 v{vT}, 5, v{vT}")
    e(f"v_and_b32 v{vT+1}, 16, v{vLane}"); e(f"v_add_u32 v{vT}, v{vT}, v{vT+1}")
    e(f"v_and_b32 v{vT+1}, 32, v{vLane}"); e(f"v_lshl_add_u32 v{vOpSt1}, v{vT+1}, 3, v{vT}")
    e(f"v_add_u32 v{vT}, 512, v{vT}"); e(f"v_mov_b32 v{vT+1}, 768")
    e(f"v_cndmask_b32 v{vOpSt2}, v{vT+1}, v{vT}, vcc")
    e(f"v_and_b32 v{vT}, 15, v{vLane}")
    e(f"s_lshr_b32 s{t0}, s{sS}, 1"); e(f"s_mul_i32 s{t0}, s{t0}, 192")
    e(f"v_cmp_gt_u32 vcc, 12, v{vT}")
    e(f"v_lshl_add_u32 v{vT+2}, v{vT}, 4, s{t0}")
    e(f"v_lshrrev_b32 v{vT+3}, 4, v{vLane}")
    e(f"v_cndmask_b32 v{vT+2}, v{vT+1}, v{vT+2}, vcc")
    e(f"v_lshl_add_u32 v{vOpLd}, v{vT+3}, 10, v{vT+2}")
    e(f"s_mul_i32 s{t0}, s{sW}, {OAS}"); e(f"s_add_u32 s{t0}, s{t0}, {OA}")
    e(f"v_lshl_add_u32 v{vT+2}, v{vT}, 2, v{vT+3}")
    e(f"v_lshl_add_u32 v{vOaW}, v{vT+2}, 1, s{t0}")
    e(f"v_lshrrev_b32 v{vT+2}, 2, v0"); e(f"v_mul_u32_u24 v{vT+2}, 5120, v{vT+2}")
    e(f"v_and_b32 v{vT+4}, 3, v0"); e(f"v_lshl_add_u32 v{vPoLd}, v{vT+4}, 4, v{vT+2}")
    e(f"v_lshl_add_u32 v{vT+2}, v{vT+3}, 2, v{vT+4}")
    e(f"v_lshlrev_b32 v{vT+2}, 3, v{vT+2}"); e(f"v_add_u32 v{vFinW}, {FIN}, v{vT+2}")
    e(f"v_mul_u32_u24 v{vT+2}, 640, v{vT+3}"); e(f"v_add_u32 v{vT+2}, v{vT+2}, v{vT+4}")
    e(f"s_lshl_b32 s{t0}, s2, 3"); e(f"v_lshl_add_u32 v{vOutOff}, v{vT+2}, 1, s{t0}")
    e(f"v_min_u32 v{vT+6}, 47, v{vLane}")
    e(f"s_mul_i32 s{t0}, s{sW}, 384"); e(f"s_add_u32 s{t0}, s{t0}, {QS}")
    e(f"v_lshl_add_u32 v{vT+7}, v{vT+6}, 3, s{t0}")
    e(f"v_lshlrev_b32 v{vT+6}, 4, v{vT+6}")
    e(f"v_and_b32 v{vT+5}, 7, v{vLane}"); e(f"v_lshl_add_u32 v{vT+5}, v{vT+5}, 4, s{t0}")
    e(f"s_lshl_b32 s{t2}, s{sH}, 2"); e(f"s_add_u32 s{t2}, s{t2}, s{sW}"); e(f"s_mul_i32 s{t2}, s{t2}, 768"); e(f"s_add_u32 s{t2}, s{t2}, 0x{WS_QX:x}")
    e("s_waitcnt vmcnt(6)")
    e(f"buffer_load_ushort v{vXf}, v{vOutOff}, {srd(rX)}, 0 offen")
    e(f"buffer_load_dwordx4 v[{vT}:{vT+3}], v{vT+6}, {srd(rWS)}, s{t2} offen sc1")
    issue_chunk(); next_static()
    e("s_waitcnt vmcnt(6)")
    issue_chunk(); next_static()
    e(f"s_mov_b32 s{sSpin}, {SPIN}")
    lab("L_qchk")
    e(f"v_cmp_ne_u32 vcc, s{sT}, v{vT+1}")
    e(f"v_cmp_ne_u32 s[{t0}:{t1}], s{sT}, v{vT+3}")
    e(f"s_or_b64 vcc, vcc, s[{t0}:{t1}]")
    e("s_cbranch_vccz L_qok")
    e(f"buffer_load_dwordx4 v[{vT}:{vT+3}], v{vT+6}, {srd(rWS)}, s{t2} offen sc1")
    e(f"s_sub_u32 s{sSpin}, s{sSpin}, 1")
    e("s_waitcnt vmcnt(0)")
    e(f"s_cmp_lg_u32 s{sSpin}, 0"); e("s_cbranch_scc1 L_qchk")
    lab("L_qok")
    e(f"ds_write2_b32 v{vT+7}, v{vT}, v{vT+2} offset0:0 offset1:1")
    e("s_waitcnt lgkmcnt(0)")
    for j in range(3): e(f"ds_read_b128 v[{vQ+4*j}:{vQ+4*j+3}], v{vT+5} offset:{128*j}")
    e(f"s_mov_b32 s{sAhead}, 6")
    stamp(2)
    e("s_waitcnt lgkmcnt(0)")
    e("s_branch L_cons")

    lab("L_top")
    e(f"s_cmp_ge_u32 s{sAhead}, 3"); e("s_cbranch_scc1 L_cons")
    e(f"s_cmp_eq_u32 s{sRem}, 0"); e("s_cbranch_scc1 L_drain")
    e("s_waitcnt vmcnt(6)")
    issue_chunk(); next_static()
    e(f"s_add_u32 s{sAhead}, s{sAhead}, 1")
    lab("L_cons")
    e(f"v_add_u32 v{vAd}, s{sRp}, v{vRow8}")
    for j in range(3): e(f"ds_read_b128 v[{vK+4*j}:{vK+4*j+3}], v{vAd} offset:{128*j}")
    for j in range(3): e(f"ds_read_b128 v[{vV+4*j}:{vV+4*j+3}], v{vAd} offset:{3072+128*j}")
    e(f"s_add_u32 s{sRp}, s{sRp}, {SLOT}"); e(f"s_cmp_eq_u32 s{sRp}, s{sEnd}"); e(f"s_cselect_b32 s{sRp}, s{sWrap}, s{sRp}")
    e(f"s_sub_u32 s{sAhead}, s{sAhead}, 1")
    for j in range(3):
        e(f"s_waitcnt lgkmcnt({5-j})")
        for i in range(4):
            k = 4*j + i
            c = "0" if k < 2 else f"v{vT + (k & 1)}"
            e(f"v_dot2_f32_bf16 v{vT + (k & 1)}, v{vK+k}, v{vQ+k}, {c}")
    nop(3)
    e(f"v_add_f32 v{vT}, v{vT}, v{vT+1}")
    for d in ("quad_perm:[1,0,3,2]", "quad_perm:[2,3,0,1]", "row_half_mirror"):
        nop(2); e(f"v_add_f32_dpp v{vT}, v{vT}, v{vT} {d} {DPP}")
    e(f"v_cvt_pk_bf16_f32 v{vT}, v{vT}, v{vT}"); e(f"v_and_b32 v{vT}, 0xffff0000, v{vT}")
    e(f"v_mul_f32 v{vT}, s{sScale}, v{vT}")
    e(f"v_cvt_pk_bf16_f32 v{vT}, v{vT}, v{vT}"); e(f"v_and_b32 v{vT}, 0xffff0000, v{vT}")
    e(f"v_cmp_gt_f32 vcc, v{vT}, v{vM}")
    e("s_cbranch_vccnz L_resc")
    lab("L_resc_done")
    e(f"v_fma_f32 v{vT+1}, v{vT}, s{sLog2e}, -v{vMl}")
    e(f"v_exp_f32 v{vT+1}, v{vT+1}"); nop(1)
    e(f"v_cvt_pk_bf16_f32 v{vT+2}, v{vT+1}, v{vT+1}")
    for d in range(4): e(f"v_and_b32 v{vP+d}, v{vT+2}, v{vMk+d}")
    e(f"v_add_f32 v{vL}, v{vL}, v{vT+1}")
    e("s_waitcnt lgkmcnt(0)")
    for j in range(3):
        e(f"v_mfma_f32_16x16x32_bf16 v[{vAcc+4*j}:{vAcc+4*j+3}], v[{vP}:{vP+3}], v[{vV+4*j}:{vV+4*j+3}], v[{vAcc+4*j}:{vAcc+4*j+3}]")
    e("s_branch L_top")
    lab("L_resc")
    e(f"v_max_f32 v{vM}, v{vM}, v{vT}"); nop(2)
    e(f"v_max_f32_dpp v{vM}, v{vM}, v{vM} row_ror:8 {DPP}")
    allreduce_rows(vM, vT+1, "v_max_f32")
    e(f"v_mul_f32 v{vT+1}, s{sLog2e}, v{vM}")
    e(f"v_sub_f32 v{vT+2}, v{vMl}, v{vT+1}")
    e(f"v_exp_f32 v{vT+2}, v{vT+2}")
    e(f"v_mov_b32 v{vMl}, v{vT+1}")
    e(f"v_mul_f32 v{vL}, v{vL}, v{vT+2}")
    for i in range(12): e(f"v_mul_f32 v{vAcc+i}, v{vAcc+i}, v{vT+2}")
    e("s_branch L_resc_done")
    lab("L_drain")
    e(f"s_cmp_eq_u32 s{sAhead}, 2"); e("s_cbranch_scc0 L_drain1")
    e(f"s_mul_i32 s{t0}, s{sH}, 192"); e(f"s_lshr_b32 s{t1}, s{sS}, 1"); e(f"s_mul_i32 s{t1}, s{t1}, 48"); e(f"s_add_u32 s{t0}, s{t0}, s{t1}")
    e(f"s_mul_i32 s{t1}, s{sW}, 12"); e(f"s_add_u32 s{t0}, s{t0}, s{t1}"); e(f"s_mul_i32 s{t0}, s{t0}, 1280")
    e(f"s_and_b32 s{t1}, s{sS}, 1"); e(f"s_mul_i32 s{t1}, s{t1}, 640"); e(f"s_add_u32 s{t0}, s{t0}, s{t1}")
    e(f"s_mov_b32 s{t1}, s{sBase}")
    for i in range(8):
        e(f"s_mov_b32 m0, s{t1}"); e(f"s_add_u32 s{t1}, s{t1}, 1024")
        e(f"buffer_load_dwordx4 v{vWoOff+i}, {srd(rWO)}, s{t0} offen nt lds")
    e("s_waitcnt vmcnt(14)")
    e("s_branch L_cons")
    lab("L_drain1")
    e(f"s_cmp_eq_u32 s{sAhead}, 1"); e("s_cbranch_scc0 L_tail")
    e("s_waitcnt vmcnt(8)")
    e("s_branch L_cons")

    lab("L_tail")
    stamp(3)
    X0, X1, X2, X3 = vT, vT+1, vT+2, vT+3
    e(f"v_add_f32_dpp v{X0}, v{vL}, v{vL} row_ror:8 {DPP}")
    e(f"v_mul_f32 v{X1}, 0.5, v{vM}")
    e(f"v_mov_b32 v{vT+4}, v{X0}")
    e(f"v_mov_b32 v{X2}, 0"); e(f"v_mov_b32 v{X3}, 0")
    e(f"v_permlane16_swap_b32 v{X0}, v{vT+4}")
    e(f"v_add_f32 v{X0}, v{X0}, v{vT+4}")
    e(f"s_lshl_b32 s{t2}, s{sH}, 2"); e(f"s_add_u32 s{t2}, s{t2}, s{sW}"); e(f"s_lshl_b32 s{t2}, s{t2}, 13"); e(f"s_add_u32 s{t2}, s{t2}, 0x{WS_OP:x}")
    e(f"s_lshl_b32 s{t0}, s{sS}, 10"); e(f"s_add_u32 s{t0}, s{t0}, s{t2}")
    for i in range(4): e(f"v_permlane32_swap_b32 v{vAcc+i}, v{vAcc+4+i}")
    for i in range(4): e(f"v_permlane32_swap_b32 v{vAcc+8+i}, v{vT+i}")
    for i in range(4): e(f"v_add_f32_dpp v{vAcc+i}, v{vAcc+4+i}, v{vAcc+i} row_ror:8 {DPP}")
    for i in range(4): e(f"v_add_f32_dpp v{vAcc+8+i}, v{vT+i}, v{vAcc+8+i} row_ror:8 {DPP}")
    e("s_mov_b32 exec_lo, 0x00ff00ff"); e("s_mov_b32 exec_hi, 0x00ff00ff")
    for i in range(4): e(f"v_bfi_b32 v{vAcc+i}, s{sFF}, v{vTg+i}, v{vAcc+i}")
    e(f"buffer_store_dwordx4 v[{vAcc}:{vAcc+3}], v{vOpSt1}, {srd(rWS)}, s{t0} offen sc1")
    for i in range(4): e(f"v_bfi_b32 v{vAcc+8+i}, s{sFF}, v{vTg+i}, v{vAcc+8+i}")
    e(f"buffer_store_dwordx4 v[{vAcc+8}:{vAcc+11}], v{vOpSt2}, {srd(rWS)}, s{t0} offen sc1")
    e("s_mov_b64 exec, -1")
    gA, gB = vK, vK+4
    e(f"s_add_u32 s{t3}, s{t2}, 4096")
    e(f"buffer_load_dwordx4 v[{gA}:{gA+3}], v{vOpLd}, {srd(rWS)}, s{t2} offen sc1")
    e(f"buffer_load_dwordx4 v[{gB}:{gB+3}], v{vOpLd}, {srd(rWS)}, s{t3} offen sc1")
    e("s_waitcnt vmcnt(4)")
    e("s_barrier")
    gemv2_breads(5)
    e(f"s_mov_b32 s{sSpin}, {SPIN}")
    lab("L_ochk")
    e("s_waitcnt vmcnt(0)")
    for i in range(4):
        e(f"v_xor_b32 v{gA+i}, v{gA+i}, v{vTg+i}"); e(f"v_xor_b32 v{gB+i}, v{gB+i}, v{vTg+i}")
    e(f"v_or3_b32 v{vT}, v{gA}, v{gA+1}, v{gA+2}"); e(f"v_or3_b32 v{vT+1}, v{gB}, v{gB+1}, v{gB+2}")
    e(f"v_or3_b32 v{vT}, v{vT}, v{gA+3}, v{gB+3}")
    e(f"v_or_b32 v{vT}, v{vT}, v{vT+1}"); e(f"v_and_b32 v{vT}, 0xff, v{vT}")
    e(f"v_cmp_ne_u32 vcc, 0, v{vT}")
    e("s_cbranch_vccz L_ook")
    e(f"buffer_load_dwordx4 v[{gA}:{gA+3}], v{vOpLd}, {srd(rWS)}, s{t2} offen sc1")
    e(f"buffer_load_dwordx4 v[{gB}:{gB+3}], v{vOpLd}, {srd(rWS)}, s{t3} offen sc1")
    e(f"s_sub_u32 s{sSpin}, s{sSpin}, 1")
    e(f"s_cmp_lg_u32 s{sSpin}, 0"); e("s_cbranch_scc1 L_ochk")
    e("s_waitcnt vmcnt(0)")
    lab("L_ook")
    stamp(4)
    mA, mB, mX = vT, vT+1, vT+2
    e(f"v_mov_b32_dpp v{mA}, v{gA+1} row_newbcast:12 {DPP}")
    e(f"v_mov_b32_dpp v{mB}, v{gB+1} row_newbcast:12 {DPP}")
    e(f"v_mul_f32 v{mA}, s{sLog2e}, v{mA}"); e(f"v_mul_f32 v{mB}, s{sLog2e}, v{mB}")
    e(f"v_max_f32 v{mX}, v{mA}, v{mB}")
    allreduce_rows(mX, vT+3, "v_max_f32")
    e(f"v_sub_f32 v{mA}, v{mA}, v{mX}"); e(f"v_sub_f32 v{mB}, v{mB}, v{mX}")
    e(f"v_exp_f32 v{mA}, v{mA}"); e(f"v_exp_f32 v{mB}, v{mB}")
    for i in range(4): e(f"v_mul_f32 v{gA+i}, v{gA+i}, v{mA}")
    for i in range(4): e(f"v_fmac_f32 v{gA+i}, v{gB+i}, v{mB}")
    nop(1)
    e(f"v_permlane32_swap_b32 v{gA}, v{gA+2}"); e(f"v_permlane32_swap_b32 v{gA+1}, v{gA+3}")
    e(f"v_add_f32 v{gA}, v{gA}, v{gA+2}"); e(f"v_add_f32 v{gA+1}, v{gA+1}, v{gA+3}")
    nop(2)
    e(f"v_permlane16_swap_b32 v{gA}, v{gA+1}")
    e(f"v_add_f32 v{gA}, v{gA}, v{gA+1}")
    nop(1)
    e(f"v_readlane_b32 s{t0}, v{gA}, 12")
    e(f"s_and_b32 s{t2}, s{sS}, 1"); e(f"s_mul_i32 s{t2}, s{t2}, 160")
    e(f"v_rcp_f32 v{vT}, s{t0}")
    e(f"s_lshl_b32 s{t1}, s{sH}, 2")
    e(f"v_mul_f32 v{gA}, v{gA}, v{vT}")
    e(f"v_cvt_pk_bf16_f32 v{gA}, v{gA}, v{gA}")
    e(f"ds_write_b16 v{vOaW}, v{gA}")
    e(f"s_add_u32 s{t2}, s{t2}, s{t1}"); e(f"s_lshr_b32 s{t1}, s{sS}, 1"); e(f"s_add_u32 s{t2}, s{t2}, s{t1}")
    e(f"s_mul_i32 s{t2}, s{t2}, 5120"); e(f"s_mul_i32 s{t1}, s{sW}, 1280"); e(f"s_add_u32 s{t2}, s{t2}, s{t1}"); e(f"s_add_u32 s{t2}, s{t2}, 0x{WS_PO:x}")
    e("s_waitcnt lgkmcnt(0)"); e("s_barrier")
    e(f"ds_read2_b64 v[{vP}:{vP+3}], v{vOaR} offset0:0 offset1:4")
    e(f"ds_read_b64 v[{vT}:{vT+1}], v{vOaR} offset:64")
    e("s_waitcnt lgkmcnt(0)")
    gemv2_mm(5)
    gemv2_store(5, t2)
    stamp(5)

    e("s_cmp_ge_u32 s2, 160"); e("s_cbranch_scc1 L_done")
    e("s_cmp_ge_u32 s2, 80")
    e(f"s_cselect_b32 s{t0}, {160*5120 - 80*64}, 0")
    e(f"s_lshl_b32 s{t1}, s2, 6"); e(f"s_add_u32 s{t0}, s{t0}, s{t1}"); e(f"s_add_u32 s{t0}, s{t0}, 0x{WS_PO:x}")
    e(f"s_add_u32 s{t1}, s{t0}, {64*5120}")
    e(f"s_add_u32 s{t2}, s{t0}, {128*5120}")
    e(f"s_cmp_ge_u32 s{sW}, 2"); e(f"s_cselect_b32 s{t2}, s{t0}, s{t2}"); e(f"s_cselect_b32 s{t3}, 0, -1")
    fA, fB, fF = vK, vK+4, vK+8
    e(f"s_mov_b32 s{sSpin}, {SPIN}")
    lab("L_fld")
    e(f"buffer_load_dwordx4 v[{fA}:{fA+3}], v{vPoLd}, {srd(rWS)}, s{t0} offen sc1")
    e(f"buffer_load_dwordx4 v[{fB}:{fB+3}], v{vPoLd}, {srd(rWS)}, s{t1} offen sc1")
    e(f"buffer_load_dwordx4 v[{fF}:{fF+3}], v{vPoLd}, {srd(rWS)}, s{t2} offen sc1")
    e(f"s_sub_u32 s{sSpin}, s{sSpin}, 1")
    e("s_waitcnt vmcnt(0)")
    for i in range(4):
        for r in (fA, fB, fF): e(f"v_xor_b32 v{r+i}, v{r+i}, v{vTg+i}")
    for i in range(4): e(f"v_or3_b32 v{vT+i}, v{fA+i}, v{fB+i}, v{fF+i}")
    e(f"v_or3_b32 v{vT}, v{vT}, v{vT+1}, v{vT+2}")
    e(f"v_or_b32 v{vT}, v{vT}, v{vT+3}"); e(f"v_and_b32 v{vT}, 0xff, v{vT}")
    e(f"v_cmp_ne_u32 vcc, 0, v{vT}")
    e("s_cbranch_vccz L_fok")
    e(f"s_cmp_lg_u32 s{sSpin}, 0"); e("s_cbranch_scc1 L_fld")
    lab("L_fok")
    stamp(6)
    for i in range(4): e(f"v_add_f32 v{fA+i}, v{fA+i}, v{fB+i}")
    for i in range(4): e(f"v_and_b32 v{fF+i}, s{t3}, v{fF+i}")
    e(f"v_permlane32_swap_b32 v{fA}, v{fA+2}"); e(f"v_permlane32_swap_b32 v{fA+1}, v{fA+3}")
    e(f"v_permlane32_swap_b32 v{fF}, v{fF+2}"); e(f"v_permlane32_swap_b32 v{fF+1}, v{fF+3}")
    e(f"v_add_f32 v{fA}, v{fA}, v{fA+2}"); e(f"v_add_f32 v{fA+1}, v{fA+1}, v{fA+3}")
    e(f"v_add_f32 v{fF}, v{fF}, v{fF+2}"); e(f"v_add_f32 v{fF+1}, v{fF+1}, v{fF+3}")
    e(f"v_permlane16_swap_b32 v{fA}, v{fA+1}"); nop(1)
    e(f"v_permlane16_swap_b32 v{fF}, v{fF+1}")
    e(f"v_add_f32 v{fA}, v{fA}, v{fA+1}"); e(f"v_add_f32 v{fA+1}, v{fF}, v{fF+1}")
    e(f"s_lshl_b32 s{t0}, s{sW}, 7")
    e(f"v_add_f32_dpp v{fA}, v{fA}, v{fA} row_ror:8 {DPP}"); e(f"v_add_f32_dpp v{fA+1}, v{fA+1}, v{fA+1} row_ror:8 {DPP}")
    e(f"v_add_u32 v{vT}, s{t0}, v{vFinW}")
    e(f"v_add_f32_dpp v{fA}, v{fA}, v{fA} row_ror:4 {DPP}"); e(f"v_add_f32_dpp v{fA+1}, v{fA+1}, v{fA+1} row_ror:4 {DPP}")
    e(f"ds_write_b64 v{vT}, v[{fA}:{fA+1}]")
    e("s_waitcnt lgkmcnt(0)"); e("s_barrier")
    e(f"s_cmp_lg_u32 s{sW}, 0"); e("s_cbranch_scc1 L_done")
    for w in range(4): e(f"ds_read_b64 v[{fA+2*w}:{fA+2*w+1}], v{vFinW} offset:{128*w}")
    e(f"v_lshlrev_b32 v{vXf}, 16, v{vXf}")
    e("s_waitcnt lgkmcnt(0)")
    for i in range(2):
        e(f"v_add_f32 v{fA+i}, v{fA+i}, v{fA+2+i}"); e(f"v_add_f32 v{fA+4+i}, v{fA+4+i}, v{fA+6+i}")
    for i in range(2): e(f"v_add_f32 v{fA+i}, v{fA+i}, v{fA+4+i}")
    e(f"v_cvt_pk_bf16_f32 v{fA+2}, v{fA}, v{fA+1}")
    e(f"v_lshlrev_b32 v{fA}, 16, v{fA+2}"); e(f"v_and_b32 v{fA+1}, 0xffff0000, v{fA+2}")
    e(f"v_add_f32 v{fA}, v{vXf}, v{fA}")
    e(f"v_cvt_pk_bf16_f32 v{fA}, v{fA}, v{fA}"); e(f"v_and_b32 v{fA}, 0xffff0000, v{fA}")
    e(f"v_add_f32 v{fA}, v{fA}, v{fA+1}")
    e(f"v_cvt_pk_bf16_f32 v{fA}, v{fA}, v{fA}")
    e("s_mov_b32 exec_lo, 0x000f000f"); e("s_mov_b32 exec_hi, 0x000f000f")
    e(f"buffer_store_short v{fA}, v{vOutOff}, {srd(rOUT)}, 0 offen")
    e("s_mov_b64 exec, -1")
    e("s_cmp_lg_u32 s2, 0"); e("s_cbranch_scc1 L_done")
    e(f"v_mov_b32 v{vT}, s{sT}"); e(f"v_mov_b32 v{vT+1}, {WS_EPOCH}")
    e("s_mov_b64 exec, 1")
    e(f"buffer_store_dword v{vT}, v{vT+1}, {srd(rWS)}, 0 offen")
    e("s_mov_b64 exec, -1")
    lab("L_done")
    if stamps:
        e("s_waitcnt vmcnt(0)")
        stamp(7)
        e("s_waitcnt lgkmcnt(0)")
        e(f"s_lshl_b32 s{t0}, s2, 2"); e(f"s_add_u32 s{t0}, s{t0}, s{sW}"); e(f"s_lshl_b32 s{t0}, s{t0}, 6"); e(f"s_add_u32 s{t0}, s{t0}, 0x{STAMP_OFF:x}")
        for i in range(16): e(f"v_mov_b32 v{vB+i}, s{84+i}")
        e(f"v_mov_b32 v{vT}, 0")
        e("s_mov_b64 exec, 1")
        for i in range(4): e(f"buffer_store_dwordx4 v[{vB+4*i}:{vB+4*i+3}], v{vT}, {srd(rWS)}, s{t0} offen offset:{16*i}")
    lab("L_end")
    e("s_endpgm")
    L.append('.section .rodata,"a"'); L.append(".p2align 6"); L.append(f".amdhsa_kernel {NAME}_kernel")
    L.append(f"  .amdhsa_next_free_vgpr {NV}"); L.append("  .amdhsa_next_free_sgpr 102"); L.append(f"  .amdhsa_accum_offset {(NV+3)//4*4}")
    L.append("  .amdhsa_group_segment_fixed_size 0"); L.append("  .amdhsa_kernarg_size 96"); L.append("  .amdhsa_user_sgpr_count 2")
    L.append("  .amdhsa_user_sgpr_kernarg_segment_ptr 1"); L.append("  .amdhsa_system_sgpr_workgroup_id_x 1")
    L.append("  .amdhsa_float_denorm_mode_32 3"); L.append("  .amdhsa_float_denorm_mode_16_64 3")
    L.append(".end_amdhsa_kernel")
    return "\n".join(L) + "\n"


def f2u(x):
    import struct
    return struct.unpack("<I", struct.pack("<f", x))[0]


if __name__ == "__main__":
    import hazard
    for name, kw in (("k_v1.s", dict()), ("k_v1s.s", dict(stamps=True))):
        t = gen(**kw)
        open(name, "w").write(t)
        errs = hazard.check(t)
        print(name, "hazards:", len(errs))
        for x in errs: print("  ", x)
```

```python
import sys, math, struct
NAME = "parallel_sum__sliding_block_cached__geglu_ffn__decode"

HEADER = """; Kernarg layout for this problem (96 bytes, ptrs only, base s[0:1]):
"""

SLOT = 6144
REG = 6 * SLOT
XN = 4 * REG
XNS = 1344
RED = XN + 4 * XNS
QS = RED + 8192
OA = QS + 4 * 384
OAS = 144
FIN = OA + 4 * OAS
CTL = FIN + 512
LDS_TOTAL = CTL + 80

WS_EPOCH = 0
WS_TS = 0x1000
WS_U = 0x10000
WS_OP = 0x100000
WS_PO = 0x400000
WS_SIZE = 0x800000
STAMP_OFF = 0x4000000

DPP = "row_mask:0xf bank_mask:0xf"
SPIN = 400000
BSTR = 100663296


def f2u(x):
    return struct.unpack("<I", struct.pack("<f", x))[0]


def gen(stamps=False, smap=None, KP=28, K0=10, K1=17, K2=19, d6=2, gain=1.0, W0=19, tlb=0, nb=2, il=True, KC=20, bias=0, cref=True, lv=((-25, 17), (10, 22), (35, 27), (70, 38)), pref=True, dl=(), dwin=30, earlyb=True, tight=True, touch=4, tflag='sc1', twait=-1, lst=None, glob=True, s32=True, lcor=0,
        fth=16, fslp=0, fpre=False, sleep=0, qsleep=4, csleep=4, prio=3, NS=4, KW=12, fixrole=True, rot=2, F8=False, fsleep=10, fgate=0):
    WL, WM, own, psleep, hrot = 4, 0, True, 0, 0
    CW = 8 if F8 else 4
    CSH = 3 if F8 else 2
    NFIN = 640 // CW
    NFL = 4 if F8 else 2
    L = []
    def e(s): L.append("    " + s)
    def lab(s): L.append(s + ":")
    def nop(n):
        if n > 0: e(f"s_nop {n-1}")
    def stamp(i, wait=False):
        if not stamps: return
        m = smap if smap is not None else {k: k for k in range(8)}
        if i in m:
            e(f"s_memrealtime s[{84+2*m[i]}:{85+2*m[i]}]")
            if wait: e("s_waitcnt lgkmcnt(0)")

    sW, sH, sS, sRole, sT = 3, 4, 5, 6, 7
    rK, rV, rWS, rW1, rWO, rWD, rX, rOUT = 8, 12, 16, 20, 24, 28, 32, 36
    sBase, sRp, sEnd, sStash = 40, 41, 42, 43
    sStride, sStep, sU, sUn, sCol, sWb = 44, 45, 46, 47, 72, 73
    sBar, sKk = 74, 75
    t0, t1, t2, t3 = 76, 77, 78, 79
    sScale, sLog2e, sFF, sSpin = 80, 81, 82, 83
    sEvM, sT0 = 48, 53
    sKb, sVb = 100, 72
    sNeed, sLand, sTot, sPub = 50, 51, 52, 53
    sLag, sRem, sMask, sK1, sIss, sFree, sSlot, sTau = 54, 55, 56, 57, 58, 59, 60, 61
    sNow, sTgt, sRep = 68, 70, 71
    sOff = 64
    sCnt = 44
    sJmp, sStp = 62, 63
    sEA, sEB = 64, 66
    sEx = [64, 66, 60, 62]
    sFo = [71, 55, 58, 59]
    sOpB, sOpS, sPoS, sFi = 68, 69, 70, 71
    def srd(r): return f"s[{r}:{r+3}]"
    vLane, vLin, vRow8, vAd, vM, vMl, vL = 1, 2, 3, 4, 5, 6, 7
    vMk, vQ, vAcc, vK, vV, vP, vT = 8, 12, 24, 36, 48, 60, 64
    vTg, vWoOff, vTrA = 72, 76, 84
    vGuLd, vHW = 86, 87
    vB, vD = 88, 148
    vSt = 88
    vG = 164
    vOpSt1, vOpSt2, vOpLd, vOaW, vOaR, vPoLd, vXf, vCtl, vFreeA, vOne = 188, 189, 190, 191, 192, 193, 194, 195, 196, 197
    vFinW, vOutOff, vC0 = 198, 199, 200
    vLg, vOwW, vOwR, vScB, vScA = 202, 203, 204, 205, 206
    vP2 = 180
    vMa, vMb, vQA = 184, 185, 186
    vSv = 128
    NV = 207

    L.append(HEADER.rstrip())
    L.append(f"; @launch grid=(256,1,1) block=(320,1,1) lds={LDS_TOTAL}")
    L.append('.amdgcn_target "amdgcn-amd-amdhsa--gfx950"')
    L.append(".text"); L.append(f".globl {NAME}_kernel"); L.append(".p2align 8")
    L.append(f".type {NAME}_kernel,@function"); lab(f"{NAME}_kernel")

    DPM = (max([W0] + [x[1] for x in lv]) + 3 + 5) // 6
    KH = KP // 2
    assert KP % 2 == 0 and KW < KH
    assert il or nb == 4
    DB = 24576 if il else 3072
    STEP = (2*DB if nb == 4 else 4*DB)
    SSTR = 3072 if il else 32*3072
    KA, KB = KH // 2, KH + KH // 2
    PC = 4 * (256 - 8 * KP)
    e("s_cmp_ge_u32 s2, 256"); e("s_cbranch_scc1 L_end")
    e("s_load_dwordx16 s[48:63], s[0:1], 0")
    e("s_load_dwordx8 s[64:71], s[0:1], 64")
    stamp(0)
    e("v_lshrrev_b32 v1, 6, v0")
    e(f"s_lshr_b32 s{sH}, s2, 3")
    e(f"v_readfirstlane_b32 s{sW}, v1")
    e(f"v_and_b32 v{vLane}, 63, v0")
    e(f"s_and_b32 s{sS}, s2, 7")
    if hrot:
        e(f"s_mul_i32 s{t0}, s{sS}, {hrot}"); e(f"s_add_u32 s{sH}, s{sH}, s{t0}"); e(f"s_and_b32 s{sH}, s{sH}, 31")
    e(f"v_lshlrev_b32 v{vLin}, 4, v{vLane}")
    e(f"s_mul_i32 s{t2}, s{sH}, 3145728"); e(f"s_add_u32 s{t2}, s{t2}, {6144*384}")
    e(f"s_mov_b32 s{rK+2}, {3*BSTR + 786432}"); e(f"s_mov_b32 s{rK+3}, 0x20000")
    e(f"s_mov_b32 s{rV+2}, {3*BSTR + 786432 - DB}"); e(f"s_mov_b32 s{rV+3}, 0x20000")
    e(f"s_mul_i32 s{sBase}, s{sW}, {REG}")
    if nb == 4:
        e(f"s_mul_i32 s{t0}, s{sW}, {BSTR}")
    else:
        e(f"s_and_b32 s{t0}, s{sW}, 1"); e(f"s_mul_i32 s{t0}, s{t0}, {BSTR - DB}"); e(f"s_mul_i32 s{t1}, s{sW}, {DB}"); e(f"s_add_u32 s{t0}, s{t0}, s{t1}")
    e(f"s_mul_i32 s{t1}, s{sS}, {SSTR}"); e(f"s_add_u32 s{t0}, s{t0}, s{t1}")
    e(f"s_mov_b32 m0, s{sBase}")
    e(f"s_add_u32 s{t1}, s{sBase}, 3072")
    e("s_waitcnt lgkmcnt(0)")
    e(f"s_add_u32 s{rK}, s50, s{t2}"); e(f"s_addc_u32 s{rK+1}, s51, 0")
    e(f"s_add_u32 s{rV}, s{rK}, {DB}"); e(f"s_addc_u32 s{rV+1}, s{rK+1}, 0")
    e(f"s_cmp_eq_u32 s{sW}, 4"); e("s_cbranch_scc1 L_nofast")
    for j in range(3): e(f"buffer_load_dwordx4 v{vLin}, {srd(rK)}, s{t0} offen offset:{j*1024} nt lds")
    e(f"s_mov_b32 m0, s{t1}"); nop(1)
    for j in range(3): e(f"buffer_load_dwordx4 v{vLin}, {srd(rV)}, s{t0} offen offset:{j*1024} nt lds")
    lab("L_nofast")
    e(f"s_add_u32 s52, s52, s{t2}"); e(f"s_addc_u32 s53, s53, 0")
    if fixrole:
        e(f"s_add_u32 s{sRole}, s{sS}, {rot}"); e(f"s_and_b32 s{sRole}, s{sRole}, 7")
    else:
        e(f"s_add_u32 s{sRole}, s{sS}, s{sH}"); e(f"s_and_b32 s{sRole}, s{sRole}, 7")
    for r in (rWS, rW1, rWO, rWD, rX, rOUT): e(f"s_mov_b32 s{r+3}, 0x20000")
    e(f"s_mov_b32 s{rWS+2}, 0x{(STAMP_OFF + 0x100000) if stamps else WS_SIZE:x}")
    e(f"s_mov_b32 s{rWO+2}, {6144*640*2}"); e(f"s_mov_b32 s{rWD+2}, {1536*640*2}")
    e(f"s_mov_b32 s{rX+2}, 5120"); e(f"s_mov_b32 s{rOUT+2}, 5120")
    e(f"s_and_b32 s{t0}, s{sH}, 15"); e(f"s_mul_i32 s{t0}, s{t0}, 3")
    e(f"s_add_u32 s{t1}, s{t0}, 2")
    e(f"s_cmp_eq_u32 s{sRole}, 6"); e(f"s_cselect_b32 s{sU}, s{t0}, s{t1}"); e(f"s_cselect_b32 s{sUn}, 2, 1")
    e(f"s_mov_b32 s{sWb}, {4*SLOT}")
    e(f"s_mul_i32 s{sCol}, s{sH}, 384")
    e(f"s_cmp_lt_u32 s{sRole}, 6")
    e(f"s_cselect_b32 s{sU}, s{sRole}, s{sU}")
    e(f"s_cselect_b32 s{sCol}, s{sCol}, 0")
    e(f"s_mov_b32 s{sStride}, 3072"); e(f"s_cselect_b32 s{sStride}, 12288, s{sStride}")
    e(f"s_add_u32 s{sWb}, s{sWb}, s{sBase}")
    e(f"v_lshrrev_b32 v{vT+1}, 3, v{vLane}")
    e(f"v_and_b32 v{vT+2}, 6, v{vT+1}")
    e(f"v_and_b32 v{vT+3}, 7, v{vLane}")
    e(f"v_xor_b32 v{vT+2}, v{vT+2}, v{vT+3}")
    e(f"v_mul_u32_u24 v{vT+1}, s{sStride}, v{vT+1}")
    e(f"v_lshl_add_u32 v{vT+1}, v{vT+2}, 4, v{vT+1}")
    e(f"s_lshl_b32 s{sStep}, s{sStride}, 3")
    e(f"v_lshlrev_b32 v{vT}, 2, v{vLane}")
    e(f"s_mul_i32 s{t0}, s{sW}, 1280")
    e(f"v_mov_b32 v{vCtl}, {CTL}")
    e(f"s_mov_b32 s{rX}, s48"); e(f"s_mov_b32 s{rX+1}, s49")
    e(f"s_cmp_lt_u32 s{sH}, 16")
    e(f"s_cselect_b32 s60, s60, s62"); e(f"s_cselect_b32 s61, s61, s63")
    e(f"s_cmp_lt_u32 s{sRole}, 6")
    e(f"s_cselect_b32 s{rW1}, s54, s60"); e(f"s_cselect_b32 s{rW1+1}, s55, s61")
    e(f"s_cselect_b32 s{rW1+2}, s{rWO+2}, s{rWD+2}")
    e(f"s_mov_b32 s{rWO}, s56"); e(f"s_mov_b32 s{rWO+1}, s57")
    e(f"s_mov_b32 s{rWD}, s64"); e(f"s_mov_b32 s{rWD+1}, s65")
    e(f"s_mov_b32 s{rOUT}, s66"); e(f"s_mov_b32 s{rOUT+1}, s67")
    e(f"s_mov_b32 s{rWS}, s70"); e(f"s_mov_b32 s{rWS+1}, s71")
    if stamps:
        for i in range(1, 8): e(f"s_mov_b64 s[{84+2*i}:{85+2*i}], s[84:85]")
    e(f"s_cmp_eq_u32 s{sW}, 4"); e("s_cbranch_scc1 L_loader")

    e(f"s_mov_b64 s[{rV}:{rV+1}], s[52:53]")
    e(f"buffer_load_dwordx4 v[{vK}:{vK+3}], v{vLin}, {srd(rX)}, s{t0} offen")
    e(f"buffer_load_dword v{vK+4}, v{vT}, {srd(rX)}, s{t0} offen offset:1024")
    vUD = vQ + 3
    def unit_dma(vo):
        e(f"s_mov_b32 s{t1}, s{sWb}")
        e(f"s_and_b32 s{t0}, s{sU}, 1"); e(f"s_mul_i32 s{t0}, s{t0}, 320"); e(f"s_mul_i32 s{t3}, s{sW}, 80"); e(f"s_add_u32 s{t0}, s{t0}, s{t3}")
        e(f"s_mul_i32 s{t0}, s{t0}, s{sStride}"); e(f"s_add_u32 s{t0}, s{t0}, s{sCol}")
        e(f"s_lshr_b32 s{t3}, s{sU}, 1"); e(f"s_lshl_b32 s{t3}, s{t3}, 7"); e(f"s_add_u32 s{t0}, s{t0}, s{t3}")
        for i in range(10):
            e(f"s_mov_b32 m0, s{t1}")
            e(f"s_add_u32 s{t1}, s{t1}, 1024")
            e(f"buffer_load_dwordx4 v{vo}, {srd(rW1)}, s{t0} offen nt lds")
            e(f"s_add_u32 s{t0}, s{t0}, s{sStep}")
    unit_dma(vT+1)
    e(f"v_mov_b32 v{vUD}, v{vT+1}")
    e("s_barrier")
    e(f"s_load_dword s{sT}, s[70:71], {WS_EPOCH}")
    e(f"s_mov_b32 s{sBar}, 0"); e(f"v_mov_b32 v{vOne}, 1")
    e(f"s_lshl_b32 s{t0}, s{sW}, 2"); e(f"s_add_u32 s{t0}, s{t0}, {CTL+16}"); e(f"v_mov_b32 v{vFreeA}, s{t0}")
    e(f"s_add_u32 s{sEnd}, s{sBase}, {REG}"); e(f"s_mov_b32 s{sRp}, s{sBase}")

    nbar = [0]
    def swbar():
        n = nbar[0]; nbar[0] += 1
        e("s_waitcnt lgkmcnt(0)")
        e("s_mov_b64 exec, 1")
        e(f"ds_add_u32 v{vCtl}, v{vOne} offset:8")
        e("s_mov_b64 exec, -1")
        e(f"s_add_u32 s{sBar}, s{sBar}, 4")
        e(f"s_mov_b32 s{sSpin}, {SPIN*8}")
        lab(f"L_bar{n}")
        e(f"ds_read_b32 v{vC0}, v{vCtl} offset:8")
        e(f"s_sub_u32 s{sSpin}, s{sSpin}, 1")
        e("s_waitcnt lgkmcnt(0)")
        e(f"v_readfirstlane_b32 s{t3}, v{vC0}")
        e(f"s_cbranch_scc1 L_bard{n}")
        e(f"s_cmp_lt_u32 s{t3}, s{sBar}"); e(f"s_cbranch_scc1 L_bar{n}")
        lab(f"L_bard{n}")

    vUA, vURd, vUWr = vQ, vQ+1, vQ+2
    vTa = vP
    e(f"v_bfe_u32 v{vT+4}, v{vLane}, 2, 2"); e(f"v_mul_u32_u24 v{vT+4}, {XNS}, v{vT+4}")
    e(f"v_lshrrev_b32 v{vT+5}, 4, v{vLane}")
    e(f"v_lshl_add_u32 v{vT+4}, v{vT+5}, 3, v{vT+4}")
    e(f"s_mul_i32 s{t0}, s{sW}, 160"); e(f"s_add_u32 s{t0}, s{t0}, {XN}")
    e(f"v_add_u32 v{vUA}, s{t0}, v{vT+4}")
    e(f"v_and_b32 v{vT+4}, 15, v{vLane}"); e(f"v_lshlrev_b32 v{vT+4}, 2, v{vT+4}")
    e(f"v_lshl_add_u32 v{vT+4}, v{vT+5}, 8, v{vT+4}")
    e(f"s_lshl_b32 s{t0}, s{sW}, 10"); e(f"s_add_u32 s{t0}, s{t0}, {RED}")
    e(f"v_add_u32 v{vUWr}, s{t0}, v{vT+4}")
    e(f"v_add_u32 v{vURd}, {RED}, v{vLin}")
    e(f"v_lshrrev_b32 v{vT+4}, 2, v{vLane}")
    e(f"v_and_b32 v{vT+5}, 3, v{vLane}"); e(f"v_lshlrev_b32 v{vT+5}, 3, v{vT+5}")
    e(f"v_lshl_add_u32 v{vT+5}, v{vT+4}, 7, v{vT+5}")
    e(f"v_add_u32 v{vT+5}, s{sWb}, v{vT+5}")
    e(f"v_bfe_u32 v{vT+4}, v{vLane}, 3, 2")
    for t in range(4):
        e(f"v_xor_b32 v{vT+6}, {t}, v{vT+4}"); e(f"v_lshl_add_u32 v{vTa+t}, v{vT+6}, 5, v{vT+5}")
    e(f"s_mul_i32 s{t0}, s{sH}, 6")
    e(f"s_lshr_b32 s{t1}, s{sH}, 4"); e(f"s_mul_i32 s{t1}, s{t1}, 48"); e(f"s_add_u32 s{t1}, s{t1}, 192")
    e(f"s_cmp_lt_u32 s{sRole}, 6"); e(f"s_cselect_b32 s{t0}, s{t0}, s{t1}")
    e(f"s_lshl_b32 s{t0}, s{t0}, 10")
    e(f"s_add_u32 s{sPub}, s{t0}, 0x{WS_U:x}")
    e("s_waitcnt vmcnt(10)")

    stamp("x")
    ev = vV
    def allreduce16(r, op):
        for d in ("quad_perm:[1,0,3,2]", "quad_perm:[2,3,0,1]", "row_half_mirror", "row_mirror"):
            nop(2); e(f"{op}_dpp v{r}, v{r}, v{r} {d} {DPP}")
    def allreduce_rows(r, tmp, op):
        for p in ("v_permlane16_swap_b32", "v_permlane32_swap_b32"):
            e(f"v_mov_b32 v{tmp}, v{r}"); nop(2); e(f"{p} v{r}, v{tmp}"); e(f"{op} v{r}, v{r}, v{tmp}")
    for i in range(5):
        e(f"v_lshlrev_b32 v{ev+2*i}, 16, v{vK+i}"); e(f"v_and_b32 v{ev+2*i+1}, 0xffff0000, v{vK+i}")
    e(f"v_add_f32 v{vT}, v{ev}, v{ev+1}")
    for i in range(2, 10): e(f"v_add_f32 v{vT}, v{vT}, v{ev+i}")
    allreduce16(vT, "v_add_f32"); allreduce_rows(vT, vT+1, "v_add_f32")
    e(f"v_mul_f32 v{vT}, 0x{f2u(1.0/640):x}, v{vT}")
    e(f"v_sub_f32 v{vT+2}, v{ev}, v{vT}"); e(f"v_mul_f32 v{vT+3}, v{vT+2}, v{vT+2}")
    for i in range(1, 10):
        e(f"v_sub_f32 v{vT+2}, v{ev+i}, v{vT}"); e(f"v_fmac_f32 v{vT+3}, v{vT+2}, v{vT+2}")
    allreduce16(vT+3, "v_add_f32"); allreduce_rows(vT+3, vT+1, "v_add_f32")
    e(f"v_mul_f32 v{vT+3}, 0x{f2u(1.0/640):x}, v{vT+3}")
    e(f"v_cvt_pk_bf16_f32 v{vT+1}, v{vT}, v{vT+3}")
    e(f"v_lshlrev_b32 v{vT}, 16, v{vT+1}")
    e(f"v_and_b32 v{vT+3}, 0xffff0000, v{vT+1}")
    e(f"v_add_f32 v{vT+3}, 0x{f2u(1e-5):x}, v{vT+3}")
    e(f"v_cvt_pk_bf16_f32 v{vT+3}, v{vT+3}, v{vT+3}"); e(f"v_and_b32 v{vT+3}, 0xffff0000, v{vT+3}")
    e(f"v_sqrt_f32 v{vT+3}, v{vT+3}"); nop(1)
    e(f"v_cvt_pk_bf16_f32 v{vT+3}, v{vT+3}, v{vT+3}"); e(f"v_and_b32 v{vT+3}, 0xffff0000, v{vT+3}")
    e(f"v_rcp_f32 v{vT+3}, v{vT+3}")
    for i in range(5):
        a, b = ev+2*i, ev+2*i+1
        e(f"v_sub_f32 v{a}, v{a}, v{vT}"); e(f"v_sub_f32 v{b}, v{b}, v{vT}")
        e(f"v_cvt_pk_bf16_f32 v{vT+1}, v{a}, v{b}")
        e(f"v_lshlrev_b32 v{a}, 16, v{vT+1}"); e(f"v_and_b32 v{b}, 0xffff0000, v{vT+1}")
        e(f"v_mul_f32 v{a}, v{a}, v{vT+3}"); e(f"v_mul_f32 v{b}, v{b}, v{vT+3}")
        e(f"v_cvt_pk_bf16_f32 v{vK+i}, v{a}, v{b}")
    e(f"s_mul_i32 s{t0}, s{sW}, {XNS}"); e(f"s_add_u32 s{t0}, s{t0}, {XN}")
    e(f"v_add_u32 v{vT}, s{t0}, v{vLin}")
    e(f"v_lshl_add_u32 v{vT+1}, v{vLane}, 2, s{t0}")
    e(f"ds_write_b128 v{vT}, v[{vK}:{vK+3}]")
    e(f"ds_write_b32 v{vT+1}, v{vK+4} offset:1024")
    swbar()
    e(f"s_add_u32 s{sT}, s{sT}, 0x9e3779b9")
    stamp("ln", True)
    vA = vK
    vS = vV
    for i in range(4):
        e(f"s_bfe_u32 s{t0}, s{sT}, 0x{(8 << 16) | (8*i):x}"); e(f"v_mov_b32 v{vTg+i}, s{t0}")
    e(f"s_mov_b32 s{sFF}, 0xff")
    lab("L_u_mm")
    e(f"s_and_b32 s{t0}, s{sU}, 1"); e(f"s_mul_i32 s{t1}, s{t0}, 640")
    e(f"v_add_u32 v{vT}, s{t1}, v{vUA}")
    e(f"ds_read2_b64 v[{vA}:{vA+3}], v{vT} offset0:0 offset1:4")
    e(f"ds_read2_b64 v[{vA+4}:{vA+7}], v{vT} offset0:8 offset1:12")
    e(f"ds_read_b64 v[{vA+8}:{vA+9}], v{vT} offset:128")
    e(f"s_lshl_b32 s{t2}, s{sU}, 10"); e(f"s_add_u32 s{t2}, s{t2}, s{sPub}")
    e("s_waitcnt vmcnt(0)")
    stamp("w1", True)
    def urd(t, k): e(f"ds_read_b64_tr_b16 v[{vB+10*t+2*k}:{vB+10*t+2*k+1}], v{vTa+t} offset:{k*2048}")
    for t in range(4): urd(t, 4)
    for t in range(4): urd(t, 0); urd(t, 1)
    e("s_waitcnt lgkmcnt(8)")
    for t in range(4):
        e(f"v_mfma_f32_16x16x16_bf16 v[{vD+4*t}:{vD+4*t+3}], v[{vA+8}:{vA+9}], v[{vB+10*t+8}:{vB+10*t+9}], 0")
    for t in range(4): urd(t, 2); urd(t, 3)
    e("s_waitcnt lgkmcnt(8)")
    for t in range(4):
        e(f"v_mfma_f32_16x16x32_bf16 v[{vD+4*t}:{vD+4*t+3}], v[{vA}:{vA+3}], v[{vB+10*t}:{vB+10*t+3}], v[{vD+4*t}:{vD+4*t+3}]")
    for t in range(4):
        e(f"s_waitcnt lgkmcnt({6-2*t})")
        e(f"v_mfma_f32_16x16x32_bf16 v[{vD+4*t}:{vD+4*t+3}], v[{vA+4}:{vA+7}], v[{vB+10*t+4}:{vB+10*t+7}], v[{vD+4*t}:{vD+4*t+3}]")
    nop(4)
    for t in range(3): e(f"ds_write_b32 v{vUWr}, v{vD+4*t} offset:{t*64}")
    nop(1)
    e(f"ds_write_b32 v{vUWr}, v{vD+12} offset:192")
    swbar()
    e(f"s_cmp_lg_u32 s{sW}, 0"); e("s_cbranch_scc1 L_u_nopub")
    for w in range(4): e(f"ds_read_b128 v[{vG+4*w}:{vG+4*w+3}], v{vURd} offset:{w*1024}")
    e("s_waitcnt lgkmcnt(0)")
    for i in range(4):
        e(f"v_add_f32 v{vG+i}, v{vG+i}, v{vG+4+i}"); e(f"v_add_f32 v{vG+8+i}, v{vG+8+i}, v{vG+12+i}")
    for i in range(4): e(f"v_add_f32 v{vG+i}, v{vG+i}, v{vG+8+i}")
    for i in range(4): e(f"v_bfi_b32 v{vG+i}, s{sFF}, v{vTg+i}, v{vG+i}")
    e(f"buffer_store_dwordx4 v[{vG}:{vG+3}], v{vLin}, {srd(rWS)}, s{t2} offen sc1")
    lab("L_u_nopub")
    e(f"v_add_u32 v{vUWr}, 4096, v{vUWr}"); e(f"v_add_u32 v{vURd}, 4096, v{vURd}")
    e(f"s_add_u32 s{sU}, s{sU}, 1"); e(f"s_sub_u32 s{sUn}, s{sUn}, 1")
    e(f"s_cmp_eq_u32 s{sUn}, 0"); e("s_cbranch_scc1 L_u_done")
    unit_dma(vUD)
    e("s_branch L_u_mm")
    lab("L_u_done")
    stamp(1)

    lab("L_head")
    e(f"v_mov_b32 v{vT+2}, 6"); e(f"ds_write_b32 v{vFreeA}, v{vT+2}")
    e(f"v_lshrrev_b32 v{vT}, 3, v{vLane}"); e(f"v_mul_u32_u24 v{vT}, 384, v{vT}")
    e(f"v_and_b32 v{vT+1}, 7, v{vLane}")
    e(f"v_lshl_add_u32 v{vRow8}, v{vT+1}, 4, v{vT}")
    e(f"v_and_b32 v{vT+4}, 1, v{vLane}"); e(f"v_lshlrev_b32 v{vT+4}, 4, v{vT+4}")
    e(f"v_mov_b32 v{vT+3}, 0xffff"); e(f"v_lshlrev_b32 v{vT+3}, v{vT+4}, v{vT+3}")
    e(f"v_lshrrev_b32 v{vT+4}, 1, v{vT+1}")
    for d in range(4):
        e(f"v_cmp_eq_u32 vcc, {d}, v{vT+4}"); nop(2); e(f"v_cndmask_b32 v{vMk+d}, 0, v{vT+3}, vcc")
    for i in range(12): e(f"v_mov_b32 v{vAcc+i}, 0")
    e(f"v_mov_b32 v{vM}, 0xff000000"); e(f"v_mov_b32 v{vMl}, 0xff000000"); e(f"v_mov_b32 v{vL}, 0")
    e(f"s_mov_b32 s{sScale}, 0x{f2u(192 ** -0.5):x}"); e(f"s_mov_b32 s{sLog2e}, 0x{f2u(math.log2(math.e)):x}")
    e(f"v_mov_b32 v{vLg}, s{sLog2e}")
    e(f"v_lshrrev_b32 v{vT+2}, 2, v{vLane}"); e(f"v_mul_u32_u24 v{vT+3}, 672, v{vT+2}")
    e(f"v_cmp_lt_u32 vcc, 47, v{vLane}")
    e(f"v_add_u32 v{vT+4}, {8320 - 12*672}, v{vT+3}")
    e(f"v_and_b32 v{vT+5}, 3, v{vLane}")
    e(f"v_cndmask_b32 v{vT+3}, v{vT+3}, v{vT+4}, vcc")
    e(f"v_lshl_add_u32 v{vT+3}, v{vT+5}, 3, v{vT+3}")
    e(f"s_mul_i32 s{t0}, s{sW}, 160")
    e(f"v_add_u32 v{vTrA}, s{t0}, v{vT+3}")
    e(f"v_add_u32 v{vTrA+1}, {2*REG}, v{vTrA}")
    e(f"v_mul_u32_u24 v{vT+2}, {OAS}, v{vT+5}")
    e(f"v_lshrrev_b32 v{vT+3}, 4, v{vLane}")
    e(f"v_lshl_add_u32 v{vT+2}, v{vT+3}, 3, v{vT+2}")
    e(f"v_add_u32 v{vOaR}, {OA}, v{vT+2}")
    e(f"v_and_b32 v{vT}, 15, v{vLane}"); e(f"v_min_u32 v{vT+1}, 2, v{vT}")
    e(f"s_mul_i32 s{t0}, s{sH}, 48"); e(f"s_lshr_b32 s{t1}, s{sS}, 1"); e(f"s_mul_i32 s{t1}, s{t1}, 12"); e(f"s_add_u32 s{t0}, s{t0}, s{t1}")
    e(f"v_lshl_add_u32 v{vT+1}, v{vT+1}, 2, s{t0}")
    e(f"v_lshrrev_b32 v{vT+2}, 6, v{vT+1}"); e(f"v_lshlrev_b32 v{vT+2}, 11, v{vT+2}")
    e(f"v_and_b32 v{vT+1}, 63, v{vT+1}"); e(f"v_lshl_add_u32 v{vT+2}, v{vT+1}, 2, v{vT+2}")
    e(f"v_lshrrev_b32 v{vT+1}, 5, v{vLane}"); e(f"v_mul_u32_u24 v{vT+1}, {48*1024}, v{vT+1}")
    e(f"v_and_b32 v{vT+4}, 1, v{vT+3}"); e(f"v_lshl_add_u32 v{vT+1}, v{vT+4}, 10, v{vT+1}")
    e(f"v_add_u32 v{vGuLd}, v{vT+1}, v{vT+2}")
    e(f"s_mul_i32 s{t0}, s{sW}, {OAS}"); e(f"s_add_u32 s{t0}, s{t0}, {OA + 24}")
    e(f"v_lshl_add_u32 v{vT+1}, v{vT}, 4, v{vT+3}")
    e(f"v_lshl_add_u32 v{vHW}, v{vT+1}, 1, s{t0}")
    e(f"v_and_b32 v{vT}, 7, v{vLane}"); e(f"v_bfe_u32 v{vT+1}, v{vLane}, 4, 1")
    e(f"v_lshl_add_u32 v{vT+1}, v{vT}, 1, v{vT+1}")
    e(f"v_bfe_u32 v{vT+2}, v{vLane}, 5, 1"); e(f"v_lshl_add_u32 v{vT+1}, v{vT+2}, 4, v{vT+1}")
    e(f"v_bfe_u32 v{vT+2}, v{vLane}, 3, 1"); e(f"v_lshl_add_u32 v{vT+1}, v{vT+2}, 5, v{vT+1}")
    e(f"v_mul_u32_u24 v{vT+2}, 43, v{vT+1}"); e(f"v_lshrrev_b32 v{vT+2}, 9, v{vT+2}")
    e(f"v_lshl_add_u32 v{vT+2}, v{vT+2}, 2, v{vT+1}"); e(f"v_lshlrev_b32 v{vT+2}, 4, v{vT+2}")
    e(f"v_cmp_gt_u32 vcc, 48, v{vT+1}")
    e(f"v_and_b32 v{vT}, 3, v{vT}"); e(f"v_lshlrev_b32 v{vT}, 8, v{vT}"); e(f"v_add_u32 v{vT}, 192, v{vT}")
    e(f"v_cndmask_b32 v{vOpSt1}, v{vT}, v{vT+2}, vcc")
    e(f"v_and_b32 v{vT}, 15, v{vLane}")
    e(f"s_lshr_b32 s{t0}, s{sS}, 1"); e(f"s_lshl_b32 s{t0}, s{t0}, 8")
    e(f"v_min_u32 v{vT+2}, 12, v{vT}")
    e(f"v_lshl_add_u32 v{vT+2}, v{vT+2}, 4, s{t0}")
    e(f"v_lshrrev_b32 v{vT+3}, 4, v{vLane}")
    e(f"v_lshl_add_u32 v{vOpLd}, v{vT+3}, 10, v{vT+2}")
    e(f"s_mul_i32 s{t0}, s{sW}, {OAS}"); e(f"s_add_u32 s{t0}, s{t0}, {OA}")
    e(f"v_mul_u32_u24 v{vT+4}, 43, v{vT}"); e(f"v_lshrrev_b32 v{vT+4}, 7, v{vT+4}")
    e(f"v_add_u32 v{vT+4}, v{vT+4}, v{vT}")
    e(f"v_min_u32 v{vT+4}, 16, v{vT+4}")
    e(f"v_lshl_add_u32 v{vT+2}, v{vT+4}, 2, v{vT+3}")
    e(f"v_lshl_add_u32 v{vOaW}, v{vT+2}, 1, s{t0}")
    e(f"v_lshrrev_b32 v{vT+2}, {CSH}, v0"); e(f"v_mul_u32_u24 v{vT+2}, 5120, v{vT+2}")
    e(f"v_and_b32 v{vT+4}, {CW-1}, v0"); e(f"v_lshl_add_u32 v{vPoLd}, v{vT+4}, 4, v{vT+2}")
    e(f"v_lshl_add_u32 v{vT+2}, v{vT+3}, {CSH}, v{vT+4}")
    e(f"v_lshlrev_b32 v{vT+2}, 2, v{vT+2}"); e(f"v_add_u32 v{vFinW}, {FIN}, v{vT+2}")
    e(f"v_mul_u32_u24 v{vT+2}, 640, v{vT+3}"); e(f"v_add_u32 v{vT+2}, v{vT+2}, v{vT+4}")
    e(f"s_lshr_b32 s{t0}, s2, 1"); e(f"s_lshl_b32 s{t0}, s{t0}, {CSH+1}"); e("s_bitcmp0_b32 s2, 0"); e(f"s_cselect_b32 s{t1}, 640, 0"); e(f"s_add_u32 s{t0}, s{t0}, s{t1}")
    e(f"v_lshl_add_u32 v{vOutOff}, v{vT+2}, 1, s{t0}")
    e(f"buffer_load_ushort v{vXf}, v{vOutOff}, {srd(rX)}, 0 offen")
    e(f"s_lshl_b32 s{sOpB}, s{sH}, 2"); e(f"s_add_u32 s{sOpB}, s{sOpB}, s{sW}"); e(f"s_lshl_b32 s{sOpB}, s{sOpB}, 13"); e(f"s_add_u32 s{sOpB}, s{sOpB}, 0x{WS_OP:x}")
    e(f"s_lshl_b32 s{sOpS}, s{sS}, 10"); e(f"s_add_u32 s{sOpS}, s{sOpS}, s{sOpB}")
    e(f"s_and_b32 s{t2}, s{sS}, 1"); e(f"s_lshl_b32 s{t2}, s{t2}, 7"); e(f"s_lshl_b32 s{t1}, s{sH}, 2")
    e(f"s_add_u32 s{t2}, s{t2}, s{t1}"); e(f"s_lshr_b32 s{t1}, s{sS}, 1"); e(f"s_add_u32 s{t2}, s{t2}, s{t1}")
    e(f"s_mul_i32 s{t2}, s{t2}, 5120"); e(f"s_mul_i32 s{t1}, s{sW}, 1280"); e(f"s_add_u32 s{t2}, s{t2}, s{t1}"); e(f"s_add_u32 s{sPoS}, s{t2}, 0x{WS_PO:x}")
    e("s_bitcmp0_b32 s2, 0")
    e(f"s_cselect_b32 s{t0}, {128*5120}, 0")
    e(f"s_lshr_b32 s{t1}, s2, 1"); e(f"s_lshl_b32 s{t1}, s{t1}, {CSH+4}"); e(f"s_add_u32 s{t0}, s{t0}, s{t1}"); e(f"s_add_u32 s{sFi}, s{t0}, 0x{WS_PO:x}")
    for i in range(1, NFL): e(f"s_add_u32 s{sFo[i]}, s{sFi}, {i*(128//NFL)*5120}")
    e(f"s_lshl_b32 s{t0}, s{sW}, 7"); e(f"v_add_u32 v{vOpSt2}, s{t0}, v{vFinW}")
    e(f"s_lshl_b32 s{t0}, s{sW}, 10"); e(f"s_add_u32 s{t0}, s{t0}, {XN}")
    e(f"v_add_u32 v{vOwW}, s{t0}, v{vOpSt1}")
    e(f"v_lshrrev_b32 v{vT}, 3, v{vLane}"); e(f"v_lshl_add_u32 v{vScB}, v{vT}, 2, s{t0}")
    e(f"v_and_b32 v{vT}, 0x3ff, v{vOpLd}"); e(f"v_add_u32 v{vOwR}, s{t0}, v{vT}")
    e(f"s_and_b32 s{t2}, s{sS}, 3"); e(f"s_lshl_b32 s{t2}, s{t2}, 4")
    e(f"s_mov_b64 s[{t0}:{t1}], 0xffff"); e(f"s_lshl_b64 s[{t0}:{t1}], s[{t0}:{t1}], s{t2}"); e(f"s_not_b64 s[{t0}:{t1}], s[{t0}:{t1}]")
    e(f"s_cmp_lt_u32 s{sS}, 4")
    e(f"s_cselect_b64 s[{sEA}:{sEA+1}], s[{t0}:{t1}], -1"); e(f"s_cselect_b64 s[{sEB}:{sEB+1}], -1, s[{t0}:{t1}]")
    e(f"v_min_u32 v{vT+6}, 47, v{vLane}")
    e(f"s_mul_i32 s{t0}, s{sW}, 384"); e(f"s_add_u32 s{t0}, s{t0}, {QS}")
    e(f"v_lshl_add_u32 v{vT+7}, v{vT+6}, 3, s{t0}")
    e(f"v_lshrrev_b32 v{vT+4}, 4, v{vT+6}"); e(f"v_and_b32 v{vT+6}, 15, v{vT+6}")
    e(f"v_lshlrev_b32 v{vT+6}, 4, v{vT+6}"); e(f"v_lshl_add_u32 v{vT+6}, v{vT+4}, 11, v{vT+6}")
    e(f"v_and_b32 v{vT+5}, 7, v{vLane}"); e(f"v_lshl_add_u32 v{vT+5}, v{vT+5}, 4, s{t0}")
    e(f"s_mul_i32 s{t2}, s{sH}, 6144"); e(f"s_lshl_b32 s{t1}, s{sW}, 8"); e(f"s_add_u32 s{t2}, s{t2}, s{t1}"); e(f"s_add_u32 s{t2}, s{t2}, 0x{WS_U:x}")
    e(f"s_mov_b32 s{sKk}, 0"); e(f"s_mov_b32 s{sNeed}, s{sW}"); e(f"s_mov_b32 s{sLand}, 0"); e(f"s_mov_b32 s{sTot}, 0x7fffffff")
    e(f"s_mov_b32 s{sSpin}, {SPIN*8}")
    for j in range(NS):
        r = vK if j == NS-1 else vSt + 24*j
        if j > 0:
            lab(f"L_sw{j}")
            e(f"ds_read_b32 v{vC0}, v{vCtl}")
            e(f"s_sub_u32 s{sSpin}, s{sSpin}, 1")
            e("s_waitcnt lgkmcnt(0)")
            e(f"v_readfirstlane_b32 s{sLand}, v{vC0}")
            e(f"s_cbranch_scc1 L_sg{j}")
            e(f"s_cmp_gt_u32 s{sLand}, s{sNeed}"); e(f"s_cbranch_scc1 L_sg{j}")
            e("s_sleep 2"); e(f"s_branch L_sw{j}")
            lab(f"L_sg{j}")
        e(f"v_add_u32 v{vAd}, s{sRp}, v{vRow8}")
        for i in range(6): e(f"ds_read_b128 v[{r+4*i}:{r+4*i+3}], v{vAd} offset:{(i//3)*3072 + (i%3)*128}")
        e(f"s_add_u32 s{sRp}, s{sRp}, {SLOT}"); e(f"s_add_u32 s{sNeed}, s{sNeed}, 4")
        e(f"v_mov_b32 v{vT+3}, {j + 7}")
        e("s_waitcnt lgkmcnt(0)")
        e(f"ds_write_b32 v{vFreeA}, v{vT+3}")
    e(f"s_mov_b32 s{sKk}, {NS}"); e(f"s_mov_b32 s{sStash}, {max(NS-1, 0)}")
    e(f"s_cmp_eq_u32 s{sRole}, 6"); e(f"s_cselect_b32 s{sK1}, {K1-d6}, {K1}")
    cm = (1 << KW) | (1 << KH) | (1 << KP) | (((1 << KA) | (1 << KB)) if nb == 2 else 0)
    assert len({KW, KH, KP, KA, KB, K1, K1-d6, K2}) == (8 if d6 else 7)
    e(f"s_lshl_b32 s{t0}, 1, s{sK1}"); e(f"s_or_b32 s{t0}, s{t0}, 0x{1 << K2:x}")
    e(f"s_cmp_eq_u32 s{sW}, 0"); e(f"s_cselect_b32 s{t0}, s{t0}, 0")
    e(f"s_or_b32 s{sEvM}, s{t0}, 0x{cm:x}"); e(f"s_mov_b32 s{sEvM+1}, 0")
    stamp("st")
    e(f"s_mov_b32 s{sSpin}, {SPIN}")
    e("s_mov_b64 s[60:61], -1"); e("s_mov_b64 s[62:63], -1")
    lab("L_qld")
    for i in range(2):
        e(f"s_mov_b64 exec, s[{60+2*i}:{61+2*i}]"); e(f"s_cbranch_execz L_ql{i}")
        e(f"buffer_load_dwordx4 v[{vG+4*i}:{vG+4*i+3}], v{vT+6}, {srd(rWS)}, s{t2} offen offset:{1024*i} sc1")
        lab(f"L_ql{i}")
    e("s_waitcnt vmcnt(0)")
    for i in range(2):
        r = vG + 4*i
        e(f"s_mov_b64 exec, s[{60+2*i}:{61+2*i}]")
        for k in range(4): e(f"v_xor_b32 v{r+k}, v{r+k}, v{vTg+k}")
        e(f"v_or3_b32 v{vT}, v{r}, v{r+1}, v{r+2}"); e(f"v_or_b32 v{vT}, v{vT}, v{r+3}")
        e(f"v_cmp_ne_u32_sdwa s[{60+2*i}:{61+2*i}], v{vT}, 0 src0_sel:BYTE_0 src1_sel:DWORD")
    e("s_mov_b64 exec, -1")
    e("s_or_b64 vcc, s[60:61], s[62:63]"); e("s_cbranch_scc0 L_qok")
    if qsleep: e(f"s_sleep {qsleep}")
    e(f"s_sub_u32 s{sSpin}, s{sSpin}, 1")
    e(f"s_cmp_gt_i32 s{sSpin}, 0"); e("s_cbranch_scc1 L_qld")
    lab("L_qok")
    for i in range(4): e(f"v_add_f32 v{vG+i}, v{vG+i}, v{vG+4+i}")
    e(f"v_cvt_pk_bf16_f32 v{vT}, v{vG}, v{vG+1}"); e(f"v_cvt_pk_bf16_f32 v{vT+1}, v{vG+2}, v{vG+3}")
    e(f"ds_write_b64 v{vT+7}, v[{vT}:{vT+1}]")
    def load_q(off):
        for j in range(3): e(f"ds_read_b128 v[{vQ+4*j}:{vQ+4*j+3}], v{vQA} offset:{128*j + off}")
    if nb == 2:
        e(f"s_and_b32 s{t0}, s{sW}, 2"); e(f"s_mul_i32 s{t0}, s{t0}, 384"); e(f"v_subrev_u32 v{vQA}, s{t0}, v{vT+5}")
        swbar()
    else:
        e(f"v_mov_b32 v{vQA}, v{vT+5}")
        e("s_waitcnt lgkmcnt(0)")
    load_q(0)
    stamp(2)
    e(f"s_mov_b32 s{sSpin}, {SPIN*8}")
    e("s_waitcnt lgkmcnt(0)")
    e(f"v_add_u32 v{vScA}, {32*(NS-1)}, v{vScB}")
    e("s_branch L_kk")

    lab("L_top")
    if NS > 1:
        e(f"s_cmp_lg_u32 s{sStash}, 0"); e("s_cbranch_scc1 L_unstash")
    e(f"s_bitcmp1_b64 s[{sEvM}:{sEvM+1}], s{sKk}"); e("s_cbranch_scc1 L_evt")
    lab("L_ffn_done")
    e(f"s_cmp_gt_u32 s{sLand}, s{sNeed}"); e("s_cbranch_scc1 L_cons")
    lab("L_wait")
    e(f"s_cmp_ge_u32 s{sKk}, s{sTot}"); e("s_cbranch_scc1 L_tail")
    e(f"ds_read_b64 v[{vC0}:{vC0+1}], v{vCtl}")
    e(f"s_sub_u32 s{sSpin}, s{sSpin}, 1"); e("s_cbranch_scc1 L_tail")
    e("s_waitcnt lgkmcnt(0)")
    e(f"v_readfirstlane_b32 s{sLand}, v{vC0}")
    e(f"v_readfirstlane_b32 s{sTot}, v{vC0+1}")
    e(f"s_cmp_gt_u32 s{sLand}, s{sNeed}"); e("s_cbranch_scc1 L_cons")
    if tight:
        e(f"s_cmp_lt_u32 s{sTot}, 0x7fffffff"); e("s_cbranch_scc1 L_wait")
    if csleep: e(f"s_sleep {csleep}")
    e("s_branch L_wait")
    lab("L_cons")
    e(f"v_add_u32 v{vAd}, s{sRp}, v{vRow8}")
    for j in range(3): e(f"ds_read_b128 v[{vK+4*j}:{vK+4*j+3}], v{vAd} offset:{128*j}")
    for j in range(3): e(f"ds_read_b128 v[{vV+4*j}:{vV+4*j+3}], v{vAd} offset:{3072+128*j}")
    e(f"s_add_u32 s{sRp}, s{sRp}, {SLOT}"); e(f"s_cmp_eq_u32 s{sRp}, s{sEnd}"); e(f"s_cselect_b32 s{sRp}, s{sBase}, s{sRp}")
    e(f"s_add_u32 s{sKk}, s{sKk}, 1"); e(f"s_add_u32 s{sNeed}, s{sNeed}, 4")
    e(f"s_add_u32 s{t0}, s{sKk}, 6")
    e(f"v_mov_b32 v{vT+3}, s{t0}")
    e(f"s_cmp_le_u32 s{sKk}, {KP}"); e("s_cbranch_scc1 L_pair")
    for j in range(3):
        e(f"s_waitcnt lgkmcnt({5-j})")
        for i in range(4):
            k = 4*j + i
            c = "0" if k < 2 else f"v{vT + (k & 1)}"
            e(f"v_dot2_f32_bf16 v{vT + (k & 1)}, v{vK+k}, v{vQ+k}, {c}")
    e("s_waitcnt lgkmcnt(0)")
    e(f"ds_write_b32 v{vFreeA}, v{vT+3}")
    nop(1)
    e(f"v_add_f32 v{vT}, v{vT}, v{vT+1}")
    for d in ("quad_perm:[1,0,3,2]", "quad_perm:[2,3,0,1]", "row_half_mirror"):
        nop(2); e(f"v_add_f32_dpp v{vT}, v{vT}, v{vT} {d} {DPP}")
    e(f"v_cvt_pk_bf16_f32 v{vT}, v{vT}, v{vT}"); e(f"v_and_b32 v{vT}, 0xffff0000, v{vT}")
    e(f"v_mul_f32 v{vT}, s{sScale}, v{vT}")
    e(f"v_cvt_pk_bf16_f32 v{vT}, v{vT}, v{vT}"); e(f"v_and_b32 v{vT}, 0xffff0000, v{vT}")
    e(f"v_cmp_gt_f32 vcc, v{vT}, v{vM}")
    e("s_cbranch_vccnz L_resc")
    lab("L_resc_done")
    e(f"v_fma_f32 v{vT+1}, v{vT}, s{sLog2e}, -v{vMl}")
    e(f"v_exp_f32 v{vT+1}, v{vT+1}"); nop(1)
    e(f"v_cvt_pk_bf16_f32 v{vT+2}, v{vT+1}, v{vT+1}")
    for d in range(4): e(f"v_and_b32 v{vP+d}, v{vT+2}, v{vMk+d}")
    e(f"v_add_f32 v{vL}, v{vL}, v{vT+1}")
    e("s_waitcnt lgkmcnt(0)")
    for j in range(3):
        e(f"v_mfma_f32_16x16x32_bf16 v[{vAcc+4*j}:{vAcc+4*j+3}], v[{vP}:{vP+3}], v[{vV+4*j}:{vV+4*j+3}], v[{vAcc+4*j}:{vAcc+4*j+3}]")
    e("s_branch L_top")
    lab("L_resc")
    e(f"v_max_f32 v{vM}, v{vM}, v{vT}"); nop(2)
    e(f"v_max_f32_dpp v{vM}, v{vM}, v{vM} row_ror:8 {DPP}")
    allreduce_rows(vM, vT+1, "v_max_f32")
    e(f"v_mul_f32 v{vT+1}, s{sLog2e}, v{vM}")
    e(f"v_sub_f32 v{vT+2}, v{vMl}, v{vT+1}")
    e(f"v_exp_f32 v{vT+2}, v{vT+2}")
    e(f"v_mov_b32 v{vMl}, v{vT+1}")
    e(f"v_mul_f32 v{vL}, v{vL}, v{vT+2}")
    for i in range(12): e(f"v_mul_f32 v{vAcc+i}, v{vAcc+i}, v{vT+2}")
    e("s_branch L_resc_done")
    lab("L_pair")
    e(f"s_lshl_b32 s{t0}, s{sKk}, 5")
    e(f"s_cmp_gt_u32 s{sKk}, {KH}"); e("s_cbranch_scc1 L_vv")
    e(f"s_sub_u32 s{t0}, s{t0}, 32")
    e(f"v_add_u32 v{vScA}, s{t0}, v{vScB}")
    lab("L_kk")
    for j in range(6):
        e(f"s_waitcnt lgkmcnt({5-j})")
        for i in range(4):
            k = 4*(j % 3) + i
            d = vT + 4 + 2*(j//3) + (k & 1)
            c = "0" if k < 2 else f"v{d}"
            e(f"v_dot2_f32_bf16 v{d}, v{vK+4*j+i}, v{vQ+k}, {c}")
    e(f"ds_write_b32 v{vFreeA}, v{vT+3}")
    e(f"v_add_f32 v{vT}, v{vT+4}, v{vT+5}")
    nop(1)
    e(f"v_add_f32 v{vT+1}, v{vT+6}, v{vT+7}")
    for d in ("quad_perm:[1,0,3,2]", "quad_perm:[2,3,0,1]", "row_half_mirror"):
        nop(1)
        e(f"v_add_f32_dpp v{vT}, v{vT}, v{vT} {d} {DPP}"); e(f"v_add_f32_dpp v{vT+1}, v{vT+1}, v{vT+1} {d} {DPP}")
    e(f"v_cvt_pk_bf16_f32 v{vT+2}, v{vT}, v{vT+1}")
    e(f"v_lshlrev_b32 v{vT}, 16, v{vT+2}"); e(f"v_and_b32 v{vT+1}, 0xffff0000, v{vT+2}")
    e(f"v_mul_f32 v{vT}, s{sScale}, v{vT}"); e(f"v_mul_f32 v{vT+1}, s{sScale}, v{vT+1}")
    e(f"v_cvt_pk_bf16_f32 v{vT+2}, v{vT}, v{vT+1}")
    e(f"ds_write_b32 v{vScA}, v{vT+2}")
    e(f"v_lshlrev_b32 v{vT}, 16, v{vT+2}"); e(f"v_and_b32 v{vT+1}, 0xffff0000, v{vT+2}")
    e(f"v_max3_f32 v{vM}, v{vM}, v{vT}, v{vT+1}")
    e("s_waitcnt lgkmcnt(0)")
    e("s_branch L_top")
    lab("L_vv")
    e(f"s_sub_u32 s{t0}, s{t0}, {32*(KH+1)}")
    e(f"v_add_u32 v{vScA}, s{t0}, v{vScB}")
    e(f"ds_read_b32 v{vT+2}, v{vScA}")
    e("s_waitcnt lgkmcnt(0)")
    e(f"ds_write_b32 v{vFreeA}, v{vT+3}")
    e(f"v_lshlrev_b32 v{vT}, 16, v{vT+2}"); e(f"v_and_b32 v{vT+1}, 0xffff0000, v{vT+2}")
    e(f"v_fma_f32 v{vT}, v{vT}, s{sLog2e}, -v{vMl}"); e(f"v_fma_f32 v{vT+1}, v{vT+1}, s{sLog2e}, -v{vMl}")
    e(f"v_exp_f32 v{vT}, v{vT}"); e(f"v_exp_f32 v{vT+1}, v{vT+1}")
    e(f"v_cvt_pk_bf16_f32 v{vT+4}, v{vT}, v{vT}"); e(f"v_cvt_pk_bf16_f32 v{vT+5}, v{vT+1}, v{vT+1}")
    for d in range(4): e(f"v_and_b32 v{vP+d}, v{vT+4}, v{vMk+d}")
    for d in range(4): e(f"v_and_b32 v{vP2+d}, v{vT+5}, v{vMk+d}")
    e(f"v_add_f32 v{vL}, v{vL}, v{vT}")
    for j in range(3):
        e(f"v_mfma_f32_16x16x32_bf16 v[{vAcc+4*j}:{vAcc+4*j+3}], v[{vP}:{vP+3}], v[{vK+4*j}:{vK+4*j+3}], v[{vAcc+4*j}:{vAcc+4*j+3}]")
    e(f"v_add_f32 v{vL}, v{vL}, v{vT+1}")
    for j in range(3):
        e(f"v_mfma_f32_16x16x32_bf16 v[{vAcc+4*j}:{vAcc+4*j+3}], v[{vP2}:{vP2+3}], v[{vV+4*j}:{vV+4*j+3}], v[{vAcc+4*j}:{vAcc+4*j+3}]")
    e("s_waitcnt lgkmcnt(0)")
    e("s_branch L_top")
    if NS > 1:
        lab("L_unstash")
        e(f"s_sub_u32 s{sStash}, s{sStash}, 1")
        for j in range(NS-1):
            if j < NS-2:
                e(f"s_cmp_lg_u32 s{sStash}, {j}"); e(f"s_cbranch_scc1 L_us{j+1}")
            for i in range(24): e(f"v_mov_b32 v{vK+i}, v{vSt+24*j+i}")
            e(f"v_add_u32 v{vScA}, {32*j}, v{vScB}")
            e("s_branch L_kk")
            if j < NS-2: lab(f"L_us{j+1}")
    lab("L_evt")
    e(f"s_cmp_eq_u32 s{sKk}, {KW}"); e("s_cbranch_scc1 L_ffn")
    e(f"s_cmp_eq_u32 s{sKk}, {KP}"); e("s_cbranch_scc1 L_part")
    e(f"s_cmp_eq_u32 s{sKk}, {K2}"); e("s_cbranch_scc1 L_share")
    e(f"s_cmp_eq_u32 s{sKk}, s{sK1}"); e("s_cbranch_scc1 L_prog")
    if nb == 2:
        e(f"s_cmp_eq_u32 s{sKk}, {KB}"); e("s_cbranch_scc1 L_vb")
    e(f"v_max_f32_dpp v{vM}, v{vM}, v{vM} row_ror:8 {DPP}")
    allreduce_rows(vM, vT+1, "v_max_f32")
    if nb == 2:
        e(f"s_cmp_eq_u32 s{sKk}, {KH}"); e("s_cbranch_scc1 L_kh")
        e(f"v_mov_b32 v{vMa}, v{vM}"); e(f"v_mov_b32 v{vM}, 0xff000000")
        load_q(768)
        e("s_waitcnt lgkmcnt(0)")
        e("s_branch L_ffn_done")
        lab("L_kh")
        e(f"v_mov_b32 v{vMb}, v{vM}"); e(f"v_mov_b32 v{vM}, v{vMa}")
    e(f"v_mul_f32 v{vMl}, s{sLog2e}, v{vM}")
    e("s_branch L_ffn_done")
    if nb == 2:
        def pair_addr():
            e(f"s_and_b32 s{t0}, s{sW}, 1"); e(f"s_lshl_b32 s{t1}, s{t0}, 12"); e(f"s_add_u32 s{t1}, s{t1}, {RED}")
            e(f"v_add_u32 v{vT}, s{t1}, v{vLin}")
            e(f"s_lshl_b32 s{t0}, s{t0}, 2"); e(f"s_add_u32 s{t0}, s{t0}, {CTL + 64}"); e(f"v_mov_b32 v{vT+1}, s{t0}")
        def dump(flag):
            for j in range(3): e(f"ds_write_b128 v{vT}, v[{vAcc+4*j}:{vAcc+4*j+3}] offset:{1024*j}")
            e(f"ds_write_b128 v{vT}, v[{vAd}:{vAd+3}] offset:3072")
            e(f"v_mov_b32 v{vT+2}, {flag}")
            e(f"ds_write_b32 v{vT+1}, v{vT+2}")
        lab("L_vb")
        pair_addr()
        e(f"s_cmp_lt_u32 s{sW}, 2"); e("s_cbranch_scc1 L_vb0")
        dump(1)
        e("s_waitcnt lgkmcnt(0)")
        lab("L_vb0")
        for i in range(12): e(f"v_mov_b32 v{vSv+i}, v{vAcc+i}")
        for i in range(3): e(f"v_mov_b32 v{vSv+12+i}, v{vM+i}")
        for i in range(12): e(f"v_mov_b32 v{vAcc+i}, 0")
        e(f"v_mov_b32 v{vL}, 0"); e(f"v_mov_b32 v{vM}, v{vMb}"); e(f"v_mul_f32 v{vMl}, s{sLog2e}, v{vMb}")
        e("s_branch L_ffn_done")
    lab("L_prog")
    e(f"ds_read_b32 v{vG}, v{vCtl} offset:56"); e(f"ds_read_b32 v{vG+2}, v{vCtl} offset:60")
    e(f"v_mov_b32 v{vG+1}, s{sT}"); e(f"v_mov_b32 v{vG+3}, s{sT}")
    e("s_waitcnt lgkmcnt(0)")
    e(f"s_lshl_b32 s{t0}, s{sH}, 7"); e(f"s_lshl_b32 s{t1}, s{sS}, 4"); e(f"s_add_u32 s{t0}, s{t0}, s{t1}"); e(f"s_add_u32 s{t0}, s{t0}, 0x{WS_TS:x}")
    e("s_mov_b64 exec, 1")
    e(f"buffer_store_dwordx4 v[{vG}:{vG+3}], v{vLin}, {srd(rWS)}, s{t0} offen sc1")
    e("s_mov_b64 exec, -1")
    e("s_branch L_ffn_done")
    lab("L_share")
    e(f"v_lshrrev_b32 v{vG+4}, 3, v{vLane}");
    if cref:
        e(f"v_mul_u32_u24 v{vG+4}, 9, v{vG+4}"); e(f"v_lshrrev_b32 v{vG+4}, 1, v{vG+4}")
        e("s_mov_b64 exec, 0xff"); e(f"v_mov_b32 v{vG+4}, s{sH}"); e("s_mov_b64 exec, -1")
    else:
        e(f"v_lshl_add_u32 v{vG+4}, v{vG+4}, 2, s{sH}"); e(f"v_and_b32 v{vG+4}, 31, v{vG+4}")
    e(f"v_and_b32 v{vG+5}, 0x70, v{vLin}"); e(f"v_lshl_add_u32 v{vG+4}, v{vG+4}, 7, v{vG+5}")
    e(f"s_mov_b32 s{t0}, 0x{WS_TS:x}")
    e(f"s_mov_b32 s{t1}, {SPIN}")
    lab("L_shld")
    e(f"buffer_load_dwordx4 v[{vG}:{vG+3}], v{vG+4}, {srd(rWS)}, s{t0} offen sc1")
    e(f"s_sub_u32 s{t1}, s{t1}, 1")
    e("s_waitcnt vmcnt(0)")
    e(f"v_xor_b32 v{vG+1}, s{sT}, v{vG+1}"); e(f"v_xor_b32 v{vG+3}, s{sT}, v{vG+3}"); e(f"v_or_b32 v{vG+1}, v{vG+1}, v{vG+3}")
    e(f"v_cmp_eq_u32 vcc, 0, v{vG+1}")
    e(f"s_and_b32 s{t2}, vcc_lo, 0xff"); e(f"s_cmp_eq_u32 s{t2}, 0xff"); e("s_cbranch_scc1 L_shok")
    e("s_sleep 4")
    e(f"s_cmp_lg_u32 s{t1}, 0"); e("s_cbranch_scc1 L_shld")
    lab("L_shok")
    if cref:
        e(f"s_andn2_b64 s[{t2}:{t3}], vcc, 0xff"); e(f"s_cselect_b64 vcc, s[{t2}:{t3}], vcc")
    def sum8(r):
        for d in ("quad_perm:[1,0,3,2]", "quad_perm:[2,3,0,1]", "row_half_mirror"):
            nop(2); e(f"v_add_f32_dpp v{r}, v{r}, v{r} {d} {DPP}")
    e(f"v_readfirstlane_b32 s{t2}, v{vG}")
    e(f"v_lshrrev_b32 v{vG+1}, 8, v{vG+2}"); e(f"v_and_b32 v{vG+2}, 0xff, v{vG+2}")
    e(f"v_subrev_u32 v{vG}, s{t2}, v{vG}")
    e(f"v_cvt_f32_u32 v{vG+1}, v{vG+1}"); e(f"v_cvt_f32_u32 v{vG+2}, v{vG+2}"); e(f"v_cvt_f32_i32 v{vG}, v{vG}")
    e(f"v_mul_f32 v{vG+6}, 0x{f2u(1.0/(4.0*(K1-K0))):x}, v{vG+1}")
    e(f"v_add_f32 v{vG+5}, 0x{f2u(PC/8.0):x}, v{vG+2}")
    e(f"v_fma_f32 v{vG+5}, v{vG+5}, v{vG+6}, v{vG}")
    e(f"v_cndmask_b32 v{vG+5}, 0, v{vG+5}, vcc"); e(f"v_cndmask_b32 v{vG+6}, 0, v{vG+6}, vcc")
    e(f"s_bcnt1_i32_b64 s{t3}, vcc")
    allreduce16(vG+5, "v_add_f32"); allreduce_rows(vG+5, vG+7, "v_add_f32")
    allreduce16(vG+6, "v_add_f32"); allreduce_rows(vG+6, vG+7, "v_add_f32")
    e(f"v_cvt_f32_u32 v{vG+7}, s{t3}"); e(f"v_rcp_f32 v{vG+7}, v{vG+7}"); nop(1)
    e(f"v_mul_f32 v{vG+5}, v{vG+5}, v{vG+7}"); e(f"v_mul_f32 v{vG+6}, v{vG+6}, v{vG+7}")
    e(f"v_cvt_i32_f32 v{vG+5}, v{vG+5}")
    e(f"v_add_u32 v{vG+10}, s{t2}, v{vG+5}")
    e(f"v_mul_f32 v{vG+6}, 0x{f2u(64.0):x}, v{vG+6}")
    e(f"v_cvt_u32_f32 v{vG+11}, v{vG+6}")
    sum8(vG+1)
    e(f"v_rcp_f32 v{vG+1}, v{vG+1}"); nop(1)
    e(f"v_mul_f32 v{vG+1}, 0x{f2u(32.0*(K1-K0)):x}, v{vG+1}")
    e(f"v_fmac_f32 v{vG+2}, v{vG}, v{vG+1}")
    e(f"v_mov_b32 v{vG+3}, v{vG+2}")
    sum8(vG+3)
    e(f"v_mul_f32 v{vG+3}, 0x{f2u(0.125):x}, v{vG+3}")
    e(f"v_sub_f32 v{vG+2}, v{vG+3}, v{vG+2}")
    e(f"v_mov_b32 v{vG+3}, 0x{f2u(64.0*PC/8):x}")
    e(f"v_fmac_f32 v{vG+3}, 0x{f2u(64.0*gain):x}, v{vG+2}")
    e(f"v_max_f32 v{vG+3}, 1.0, v{vG+3}"); e(f"v_min_f32 v{vG+3}, 0x{f2u(64.0*PC):x}, v{vG+3}")
    e(f"v_cvt_u32_f32 v{vG+3}, v{vG+3}")
    for sh in (1, 2, 4):
        nop(2); e(f"v_add_u32_dpp v{vG+3}, v{vG+3}, v{vG+3} row_shr:{sh} row_mask:0xf bank_mask:0xf bound_ctrl:0")
    e(f"v_cvt_f32_u32 v{vG+3}, v{vG+3}"); nop(1)
    e(f"v_readlane_b32 s{t2}, v{vG+3}, 7"); nop(2)
    e(f"v_rcp_f32 v{vG+2}, s{t2}"); nop(1)
    e(f"v_mul_f32 v{vG+2}, 0x{f2u(float(PC)):x}, v{vG+2}")
    e(f"v_fma_f32 v{vG+3}, v{vG+3}, v{vG+2}, 0.5")
    e(f"v_cvt_u32_f32 v{vG+3}, v{vG+3}")
    e(f"v_min_u32 v{vG+3}, {PC}, v{vG+3}")
    e(f"s_sub_u32 s{t0}, s{sS}, 1"); e(f"s_max_i32 s{t0}, s{t0}, 0")
    e(f"v_readlane_b32 s{t1}, v{vG+3}, s{sS}")
    e(f"v_readlane_b32 s{t0}, v{vG+3}, s{t0}")
    e(f"s_cmp_eq_u32 s{sS}, 7"); e(f"s_cselect_b32 s{t1}, {PC}, s{t1}")
    e(f"s_cmp_eq_u32 s{sS}, 0"); e(f"s_cselect_b32 s{t0}, 0, s{t0}")
    e(f"v_mov_b32 v{vG+8}, s{t0}"); e(f"v_mov_b32 v{vG+9}, s{t1}")
    e(f"ds_write_b128 v{vCtl}, v[{vG+8}:{vG+11}] offset:32")
    e("s_waitcnt lgkmcnt(0)")
    e("s_branch L_ffn_done")
    lab("L_part")
    if nb == 2:
        pair_addr()
        e(f"s_lshr_b32 s{t2}, s{sW}, 1"); e(f"s_add_u32 s{t2}, s{t2}, 1")
        lab("L_xw")
        e(f"ds_read_b32 v{vC0}, v{vT+1}")
        e(f"s_sub_u32 s{sSpin}, s{sSpin}, 1")
        e("s_waitcnt lgkmcnt(0)")
        e(f"v_readfirstlane_b32 s{t3}, v{vC0}")
        e("s_cbranch_scc1 L_xg")
        e(f"s_cmp_lt_u32 s{t3}, s{t2}"); e("s_cbranch_scc1 L_xw")
        lab("L_xg")
        for j in range(4): e(f"ds_read_b128 v[{vG+4*j}:{vG+4*j+3}], v{vT} offset:{1024*j}")
        e(f"s_cmp_ge_u32 s{sW}, 2"); e("s_cbranch_scc1 L_xm")
        dump(2)
        load_q(0)
        e("s_waitcnt lgkmcnt(0)")
        for i in range(12): e(f"v_mov_b32 v{vAcc+i}, v{vSv+i}")
        for i in range(3): e(f"v_mov_b32 v{vM+i}, v{vSv+12+i}")
        lab("L_xm")
        e("s_waitcnt lgkmcnt(0)")
        e(f"v_max_f32 v{vM}, v{vM}, v{vG+13}"); e(f"v_max_f32 v{vT+2}, v{vMl}, v{vG+14}")
        e(f"v_sub_f32 v{vT}, v{vMl}, v{vT+2}"); e(f"v_sub_f32 v{vT+1}, v{vG+14}, v{vT+2}")
        e(f"v_exp_f32 v{vT}, v{vT}"); e(f"v_exp_f32 v{vT+1}, v{vT+1}")
        e(f"v_mov_b32 v{vMl}, v{vT+2}")
        e(f"v_mul_f32 v{vL}, v{vL}, v{vT}"); e(f"v_fmac_f32 v{vL}, v{vG+15}, v{vT+1}")
        for i in range(12):
            e(f"v_mul_f32 v{vAcc+i}, v{vAcc+i}, v{vT}"); e(f"v_fmac_f32 v{vAcc+i}, v{vG+i}, v{vT+1}")
    lab("L_pw")
    e(f"ds_read_b32 v{vC0}, v{vCtl}"); e(f"ds_read_b32 v{vC0+1}, v{vCtl} offset:48")
    e(f"s_sub_u32 s{sSpin}, s{sSpin}, 1")
    e("s_waitcnt lgkmcnt(0)")
    e(f"v_readfirstlane_b32 s{sLand}, v{vC0}"); e(f"v_readfirstlane_b32 s{t0}, v{vC0+1}")
    e("s_cbranch_scc1 L_pg")
    e(f"s_cmp_gt_u32 s{sLand}, s{sNeed}"); e("s_cbranch_scc1 L_pg")
    e("s_sleep 1"); e("s_branch L_pw")
    lab("L_pg")
    e(f"s_bitcmp1_b32 s{t0}, s{sW}"); e("s_cbranch_scc1 L_cons")
    e(f"s_add_u32 s{sRp}, s{sRp}, {SLOT}"); e(f"s_cmp_eq_u32 s{sRp}, s{sEnd}"); e(f"s_cselect_b32 s{sRp}, s{sBase}, s{sRp}")
    e(f"s_add_u32 s{sKk}, s{sKk}, 1"); e(f"s_add_u32 s{sNeed}, s{sNeed}, 4")
    e(f"v_mov_b32 v{vT+3}, {KP + 7}")
    e(f"ds_write_b32 v{vFreeA}, v{vT+3}")
    e("s_waitcnt lgkmcnt(0)")
    e("s_branch L_ffn_done")
    lab("L_ffn")
    e(f"s_lshl_b32 s{t0}, s{sW}, 8"); e(f"s_add_u32 s{t0}, s{t0}, 0x{WS_U + 192*1024:x}")
    if touch & 1:
        e(f"buffer_load_dwordx4 v[{vG+4}:{vG+7}], v{vLin}, {srd(rWS)}, s{sOpS} offen {tflag}")
    if touch & 2:
        e(f"buffer_load_dwordx4 v[{vG+8}:{vG+11}], v{vLin}, {srd(rWS)}, s{sPoS} offen {tflag}")
        e("s_mov_b64 exec, 0xffff")
        e(f"buffer_load_dwordx4 v[{vG+12}:{vG+15}], v{vLin}, {srd(rWS)}, s{sPoS} offen offset:1024 {tflag}")
        e("s_mov_b64 exec, -1")
    if tlb:
        e("s_mov_b64 exec, 1")
        if tlb & 1:
            e(f"s_mul_i32 s{t2}, s{sW}, {BSTR}"); e(f"s_mul_i32 s{t3}, s{sS}, {32*3072}"); e(f"s_add_u32 s{t2}, s{t2}, s{t3}")
            e(f"buffer_load_dword v{vG+12}, v{vLin}, {srd(rV)}, s{t2} offen nt")
        if tlb & 2:
            e(f"s_lshl_b32 s{t2}, s{sH}, 2"); e(f"s_lshr_b32 s{t3}, s{sS}, 1"); e(f"s_add_u32 s{t2}, s{t2}, s{t3}")
            e(f"s_mul_i32 s{t3}, s{t2}, {12*1280}"); e(f"s_mul_i32 s{t2}, s{t2}, {48*1280}")
            e(f"s_cmp_lg_u32 s{sW}, 1"); e("s_cbranch_scc1 L_tl1")
            e(f"buffer_load_dword v{vG+13}, v{vLin}, {srd(rWO)}, s{t2} offen nt")
            e(f"buffer_load_dword v{vG+14}, v{vLin}, {srd(rWD)}, s{t3} offen nt")
            lab("L_tl1")
        if tlb & 4:
            e(f"s_cmp_lg_u32 s{sW}, 2"); e("s_cbranch_scc1 L_tl2")
            e(f"buffer_load_dword v{vG+13}, v{vLin}, {srd(rOUT)}, 0 offen")
            e(f"buffer_load_dword v{vG+14}, v{vLin}, {srd(rWS)}, s{sFi} offen")
            lab("L_tl2")
        e("s_mov_b64 exec, -1")
    e(f"s_mov_b32 s{t1}, {SPIN}")
    lab("L_gld")
    e(f"buffer_load_dwordx4 v[{vG}:{vG+3}], v{vGuLd}, {srd(rWS)}, s{t0} offen sc1")
    e(f"s_sub_u32 s{t1}, s{t1}, 1")
    e("s_waitcnt vmcnt(0)")
    for i in range(4): e(f"v_xor_b32 v{vG+i}, v{vG+i}, v{vTg+i}")
    e(f"v_or3_b32 v{vT}, v{vG}, v{vG+1}, v{vG+2}"); e(f"v_or_b32 v{vT}, v{vT}, v{vG+3}"); e(f"v_and_b32 v{vT}, 0xff, v{vT}")
    e(f"v_cmp_ne_u32 vcc, 0, v{vT}")
    e("s_cbranch_vccz L_gok")
    e("s_sleep 4")
    e(f"s_cmp_lg_u32 s{t1}, 0"); e("s_cbranch_scc1 L_gld")
    lab("L_gok")
    e(f"v_permlane16_swap_b32 v{vG}, v{vG+1}"); e(f"v_permlane16_swap_b32 v{vG+2}, v{vG+3}")
    e(f"v_add_f32 v{vG}, v{vG}, v{vG+1}"); e(f"v_add_f32 v{vG+1}, v{vG+2}, v{vG+3}")
    nop(2)
    e(f"v_permlane32_swap_b32 v{vG}, v{vG+1}")
    e(f"v_cvt_pk_bf16_f32 v{vG+2}, v{vG}, v{vG+1}")
    e(f"v_lshlrev_b32 v{vG}, 16, v{vG+2}"); e(f"v_and_b32 v{vG+1}, 0xffff0000, v{vG+2}")
    cg = -2.0 * math.sqrt(2.0 / math.pi) * math.log2(math.e)
    e(f"v_mul_f32 v{vG+2}, v{vG}, v{vG}")
    e(f"v_mul_f32 v{vG+2}, v{vG+2}, v{vG}")
    e(f"v_mov_b32 v{vG+3}, v{vG}")
    e(f"v_fmac_f32 v{vG+3}, 0x{f2u(0.044715):x}, v{vG+2}")
    e(f"v_mul_f32 v{vG+3}, 0x{f2u(cg):x}, v{vG+3}")
    e(f"v_exp_f32 v{vG+3}, v{vG+3}"); nop(1)
    e(f"v_add_f32 v{vG+3}, 1.0, v{vG+3}")
    e(f"v_rcp_f32 v{vG+3}, v{vG+3}"); nop(1)
    e(f"v_mul_f32 v{vG+3}, v{vG}, v{vG+3}")
    e(f"v_cvt_pk_bf16_f32 v{vG+3}, v{vG+3}, v{vG+3}"); e(f"v_and_b32 v{vG+3}, 0xffff0000, v{vG+3}")
    e(f"v_mul_f32 v{vG+3}, v{vG+3}, v{vG+1}")
    e(f"v_cvt_pk_bf16_f32 v{vG+3}, v{vG+3}, v{vG+3}")
    e("s_mov_b32 exec_lo, 0x00080008"); e("s_mov_b32 exec_hi, 0x00080008")
    e(f"v_mov_b32 v{vG+3}, 0")
    e("s_mov_b32 exec_lo, 0x000f000f"); e("s_mov_b32 exec_hi, 0x000f000f")
    e(f"ds_write_b16 v{vHW}, v{vG+3}")
    e("s_mov_b64 exec, -1")
    def breads(kbs):
        n = 0
        for t in range(5):
            for kb in kbs:
                e(f"ds_read_b64_tr_b16 v[{vB+8*t+2*kb}:{vB+8*t+2*kb+1}], v{vTrA+(kb>>1)} offset:{32*t + (kb&1)*REG}"); n += 1
                if n == 12: e("s_waitcnt lgkmcnt(6)")
    if WM:
        lab("L_ww")
        e(f"ds_read_b32 v{vC0}, v{vCtl}")
        e(f"s_sub_u32 s{sSpin}, s{sSpin}, 1")
        e("s_waitcnt lgkmcnt(0)")
        e(f"v_readfirstlane_b32 s{sLand}, v{vC0}")
        e("s_cbranch_scc1 L_wg")
        e(f"s_cmp_ge_u32 s{sLand}, {4*KW+8}"); e("s_cbranch_scc1 L_wg")
        e("s_sleep 2"); e("s_branch L_ww")
        lab("L_wg")
        breads(range(WM))
        e(f"s_add_u32 s{sKk}, s{sKk}, 2"); e(f"s_add_u32 s{sNeed}, s{sNeed}, 8"); e(f"s_add_u32 s{sRp}, s{sRp}, {2*SLOT}")
        e(f"v_mov_b32 v{vT+3}, {KW + 8}")
        e("s_waitcnt lgkmcnt(0)")
        e(f"ds_write_b32 v{vFreeA}, v{vT+3}")
    e("s_waitcnt lgkmcnt(0)")
    e("s_branch L_ffn_done")

    sBd = 54
    def maybe_b(tag):
        e(f"s_cmp_lg_u32 s{sBd}, 0"); e(f"s_cbranch_scc1 L_mb{tag}")
        e("s_mov_b64 exec, -1")
        e(f"ds_read_b32 v{vC0}, v{vCtl} offset:52")
        e("s_waitcnt lgkmcnt(0)")
        e(f"v_readfirstlane_b32 s{sBd}, v{vC0}")
        e(f"s_cmp_eq_u32 s{sBd}, 0"); e(f"s_cbranch_scc1 L_mb{tag}")
        breads(range(4))
        lab(f"L_mb{tag}")
    def polln(nm, regs, vo, soffs, pre=0, adapt=False, idle=None):
        n = len(regs)
        ex = lambda i: f"s[{sEx[i]}:{sEx[i]+1}]"
        if not pre:
            for i in range(n):
                e(f"s_mov_b64 {ex(i)}, -1")
                e(f"buffer_load_dwordx4 v[{regs[i]}:{regs[i]+3}], v{vo}, {srd(rWS)}, s{soffs[i]} offen sc1")
            e(f"s_mov_b32 s{sSpin}, {SPIN}")
        e(f"s_waitcnt vmcnt({int(pre)}) lgkmcnt(0)")
        e(f"s_branch L_{nm}_d")
        lab(f"L_{nm}")
        if sleep: e(f"s_sleep {sleep}")
        if adapt and fslp:
            e(f"s_bcnt1_i32_b64 s{t2}, {ex(0)}")
            for i in range(1, n):
                e(f"s_bcnt1_i32_b64 s{t3}, {ex(i)}"); e(f"s_add_u32 s{t2}, s{t2}, s{t3}")
            e(f"s_cmp_le_u32 s{t2}, {fth}"); e(f"s_cbranch_scc1 L_{nm}_n")
            e(f"s_sleep {fslp}")
            lab(f"L_{nm}_n")
        for i in range(n):
            e(f"s_mov_b64 exec, {ex(i)}"); e(f"s_cbranch_execz L_{nm}_l{i}")
            e(f"buffer_load_dwordx4 v[{regs[i]}:{regs[i]+3}], v{vo}, {srd(rWS)}, s{soffs[i]} offen sc1")
            lab(f"L_{nm}_l{i}")
        e(f"s_sub_u32 s{sSpin}, s{sSpin}, 1"); e(f"s_cbranch_scc1 L_{nm}_x")
        if idle: idle(nm)
        e("s_waitcnt vmcnt(0)")
        lab(f"L_{nm}_d")
        for i in range(n):
            r = regs[i]
            e(f"s_mov_b64 exec, {ex(i)}"); e(f"s_cbranch_execz L_{nm}_c{i}")
            for k in range(4): e(f"v_xor_b32 v{r+k}, v{r+k}, v{vTg+k}")
            e(f"v_or3_b32 v{vT}, v{r}, v{r+1}, v{r+2}"); e(f"v_or_b32 v{vT}, v{vT}, v{r+3}")
            e(f"v_cmp_ne_u32_sdwa {ex(i)}, v{vT}, 0 src0_sel:BYTE_0 src1_sel:DWORD")
            lab(f"L_{nm}_c{i}")
        e(f"s_or_b64 vcc, {ex(0)}, {ex(1)}")
        for i in range(2, n): e(f"s_or_b64 vcc, vcc, {ex(i)}")
        e(f"s_cbranch_scc1 L_{nm}")
        lab(f"L_{nm}_x")
        e("s_mov_b64 exec, -1")

    lab("L_tail")
    stamp(3)
    gA, gB = vK, vK+4
    if own:
        e(f"s_add_u32 s{t1}, s{sOpB}, 4096")
        e(f"s_mov_b64 exec, s[{sEA}:{sEA+1}]")
        e(f"buffer_load_dwordx4 v[{gA}:{gA+3}], v{vOpLd}, {srd(rWS)}, s{sOpB} offen sc1")
        e(f"s_mov_b64 exec, s[{sEB}:{sEB+1}]")
        e(f"buffer_load_dwordx4 v[{gB}:{gB+3}], v{vOpLd}, {srd(rWS)}, s{t1} offen sc1")
        e("s_mov_b64 exec, -1")
    X0, X1, X2, X3 = vT, vT+1, vT+2, vT+3
    e(f"v_add_f32_dpp v{X0}, v{vL}, v{vL} row_ror:8 {DPP}")
    e(f"v_mul_f32 v{X1}, 0.5, v{vM}")
    e(f"v_mov_b32 v{vT+4}, v{X0}")
    nop(1)
    e(f"v_permlane32_swap_b32 v{vAcc}, v{vAcc+4}")
    e(f"v_permlane16_swap_b32 v{X0}, v{vT+4}")
    e(f"v_add_f32 v{X0}, v{X0}, v{vT+4}")
    for i in range(1, 4): e(f"v_permlane32_swap_b32 v{vAcc+i}, v{vAcc+4+i}")
    for i in range(4): e(f"v_permlane32_swap_b32 v{vAcc+8+i}, v{vT+i}")
    for i in range(4): e(f"v_add_f32_dpp v{vAcc+i}, v{vAcc+4+i}, v{vAcc+i} row_ror:8 row_mask:0xf bank_mask:0x3")
    for i in range(4): e(f"v_add_f32_dpp v{vAcc+i}, v{vAcc+8+i}, v{vT+i} row_ror:8 row_mask:0xf bank_mask:0xc")
    for i in range(4): e(f"v_bfi_b32 v{vAcc+4+i}, s{sFF}, v{vTg+i}, v{vAcc+i}")
    e("s_mov_b32 exec_hi, 0x00ff0fff")
    e(f"buffer_store_dwordx4 v[{vAcc+4}:{vAcc+7}], v{vOpSt1}, {srd(rWS)}, s{sOpS} offen sc1")
    if own:
        for i in range(4): e(f"v_xor_b32 v{vAcc+i}, v{vAcc+4+i}, v{vTg+i}")
        e(f"ds_write_b128 v{vOwW}, v[{vAcc}:{vAcc+3}]")
        e(f"s_not_b64 exec, s[{sEA}:{sEA+1}]")
        e(f"ds_read_b128 v[{gA}:{gA+3}], v{vOwR}")
        e(f"s_not_b64 exec, s[{sEB}:{sEB+1}]")
        e(f"ds_read_b128 v[{gB}:{gB+3}], v{vOwR}")
        e(f"s_mov_b32 s{sSpin}, {SPIN}")
        if WL:
            e("s_mov_b64 exec, -1")
            e(f"ds_read_b32 v{vC0}, v{vCtl} offset:12")
            e("s_waitcnt lgkmcnt(0)")
            e(f"v_add_u32 v{vTrA}, v{vTrA}, v{vC0}"); e(f"v_add_u32 v{vTrA+1}, v{vTrA+1}, v{vC0}")
    else:
        e("s_mov_b32 exec_hi, -1")
        if psleep: e(f"s_sleep {psleep}")
    e(f"s_mov_b32 s{sBd}, 0")
    polln("op", [gA, gB], vOpLd, [sOpB, t1], pre=1, idle=(maybe_b if earlyb else None))
    stamp(4)
    mA, mB, mX = vT, vT+1, vT+2
    e(f"v_mul_f32_dpp v{mA}, v{gA+1}, v{vLg} row_newbcast:12 {DPP}")
    e(f"v_mul_f32_dpp v{mB}, v{gB+1}, v{vLg} row_newbcast:12 {DPP}")
    e(f"v_max_f32 v{mX}, v{mA}, v{mB}")
    e(f"v_max_f32 v{vT+3}, v{mA}, v{mB}")
    nop(2)
    e(f"v_permlane16_swap_b32 v{mX}, v{vT+3}")
    e(f"v_max_f32 v{vT+4}, v{mX}, v{vT+3}"); e(f"v_max_f32 v{mX}, v{mX}, v{vT+3}")
    nop(2)
    e(f"v_permlane32_swap_b32 v{mX}, v{vT+4}")
    e(f"v_max_f32 v{mX}, v{mX}, v{vT+4}")
    e(f"v_sub_f32 v{mA}, v{mA}, v{mX}"); e(f"v_sub_f32 v{mB}, v{mB}, v{mX}")
    e(f"v_exp_f32 v{mA}, v{mA}"); e(f"v_exp_f32 v{mB}, v{mB}")
    for i in range(4): e(f"v_mul_f32 v{gA+i}, v{gA+i}, v{mA}")
    for i in (0, 2, 1, 3): e(f"v_fmac_f32 v{gA+i}, v{gB+i}, v{mB}")
    e(f"v_permlane32_swap_b32 v{gA}, v{gA+2}")
    e(f"v_add_f32 v{gA}, v{gA}, v{gA+2}")
    e(f"v_permlane32_swap_b32 v{gA+1}, v{gA+3}")
    e(f"v_add_f32 v{gA+1}, v{gA+1}, v{gA+3}")
    nop(2)
    e(f"v_permlane16_swap_b32 v{gA}, v{gA+1}")
    e(f"v_add_f32 v{gA}, v{gA}, v{gA+1}")
    nop(1)
    e(f"v_readlane_b32 s{t0}, v{gA}, 12")
    nop(2)
    e(f"v_rcp_f32 v{vT}, s{t0}")
    nop(1)
    e(f"v_mul_f32 v{gA}, v{gA}, v{vT}")
    e(f"v_cvt_pk_bf16_f32 v{gA}, v{gA}, v{gA}")
    e(f"ds_write_b16 v{vOaW}, v{gA}")
    e("s_waitcnt lgkmcnt(0)"); e("s_barrier")
    e(f"ds_read2_b64 v[{vP}:{vP+3}], v{vOaR} offset0:0 offset1:4")
    e(f"ds_read2_b64 v[{vT}:{vT+3}], v{vOaR} offset0:8 offset1:12")
    if earlyb:
        e(f"s_cmp_lg_u32 s{sBd}, 0"); e("s_cbranch_scc1 L_bdone")
    breads(range(WM, 4))
    lab("L_bdone")
    fA = vK
    fR = [vK + 4*i for i in range(NFL)]
    if fpre:
        e(f"s_cmp_ge_u32 s2, {NFIN}"); e("s_cbranch_scc1 L_nofpre")
        for i in range(NFL): e(f"buffer_load_dwordx4 v[{fR[i]}:{fR[i]+3}], v{vPoLd}, {srd(rWS)}, s{sFo[i]} offen sc1")
        lab("L_nofpre")
    e("s_waitcnt lgkmcnt(0)")
    for t in range(5):
        e(f"v_mfma_f32_16x16x32_bf16 v[{vD+4*t}:{vD+4*t+3}], v[{vP}:{vP+3}], v[{vB+8*t}:{vB+8*t+3}], 0")
        e(f"v_mfma_f32_16x16x32_bf16 v[{vD+4*t}:{vD+4*t+3}], v[{vT}:{vT+3}], v[{vB+8*t+4}:{vB+8*t+7}], v[{vD+4*t}:{vD+4*t+3}]")
    for t in range(1, 4):
        if t == 1: nop(2)
        for i in range(4): e(f"v_mov_b32_dpp v{vD+i}, v{vD+4*t+i} quad_perm:[0,1,2,3] row_mask:0x{1<<t:x} bank_mask:0xf")
    for i in range(4): e(f"v_bfi_b32 v{vD+i}, s{sFF}, v{vTg+i}, v{vD+i}")
    e(f"buffer_store_dwordx4 v[{vD}:{vD+3}], v{vLin}, {srd(rWS)}, s{sPoS} offen sc1")
    e("s_mov_b64 exec, 0xffff")
    for i in range(4): e(f"v_bfi_b32 v{vD+16+i}, s{sFF}, v{vTg+i}, v{vD+16+i}")
    e(f"buffer_store_dwordx4 v[{vD+16}:{vD+19}], v{vLin}, {srd(rWS)}, s{sPoS} offen offset:1024 sc1")
    e("s_mov_b64 exec, -1")
    stamp(5)

    e(f"s_cmp_ge_u32 s2, {NFIN}"); e("s_cbranch_scc1 L_done")
    if fsleep: e(f"s_sleep {fsleep}")
    if fgate:
        e(f"ds_read_b32 v{vC0}, v{vCtl} offset:40")
        e("s_waitcnt lgkmcnt(0)")
        e(f"v_readfirstlane_b32 s{t0}, v{vC0}")
        e(f"s_mov_b32 s{t1}, 16")
        e(f"s_add_u32 s{t0}, s{t0}, {fgate}")
        lab("L_gate")
        e(f"s_memrealtime s[{t2}:{t3}]")
        e(f"s_sub_u32 s{t1}, s{t1}, 1")
        e("s_waitcnt lgkmcnt(0)")
        e("s_cbranch_scc1 L_gated")
        e(f"s_sub_u32 s{t2}, s{t2}, s{t0}"); e(f"s_cmp_ge_i32 s{t2}, 0"); e("s_cbranch_scc1 L_gated")
        e("s_sleep 1")
        e("s_branch L_gate")
        lab("L_gated")
    if fpre:
        for i in range(NFL): e(f"s_mov_b64 s[{sEx[i]}:{sEx[i]+1}], -1")
        e(f"s_mov_b32 s{sSpin}, {SPIN}")
    polln("fi", fR, vPoLd, sFo, pre=(2 if fpre else 0), adapt=True)
    stamp(6)
    if F8:
        for i in range(8): e(f"v_add_f32 v{fA+i}, v{fA+i}, v{fA+8+i}")
    for i in (0, 2, 1, 3): e(f"v_add_f32 v{fA+i}, v{fA+i}, v{fA+4+i}")
    e(f"v_permlane32_swap_b32 v{fA}, v{fA+2}")
    e(f"v_add_f32 v{fA}, v{fA}, v{fA+2}")
    e(f"v_permlane32_swap_b32 v{fA+1}, v{fA+3}")
    e(f"v_add_f32 v{fA+1}, v{fA+1}, v{fA+3}")
    nop(2)
    e(f"v_permlane16_swap_b32 v{fA}, v{fA+1}")
    e(f"v_add_f32 v{fA}, v{fA}, v{fA+1}")
    nop(2)
    e(f"v_add_f32_dpp v{fA}, v{fA}, v{fA} row_ror:8 {DPP}")
    if not F8:
        nop(2)
        e(f"v_add_f32_dpp v{fA}, v{fA}, v{fA} row_ror:4 {DPP}")
    e(f"ds_write_b32 v{vOpSt2}, v{fA}")
    e("s_waitcnt lgkmcnt(0)"); e("s_barrier")
    e(f"s_cmp_lg_u32 s{sW}, 0"); e("s_cbranch_scc1 L_done")
    for w in range(4): e(f"ds_read_b32 v{fA+w}, v{vFinW} offset:{128*w}")
    e(f"v_lshlrev_b32 v{vXf}, 16, v{vXf}")
    e("s_waitcnt lgkmcnt(0)")
    e(f"v_add_f32 v{fA}, v{fA}, v{fA+1}"); e(f"v_add_f32 v{fA+2}, v{fA+2}, v{fA+3}")
    e(f"v_add_f32 v{fA}, v{fA}, v{fA+2}")
    e(f"v_add_f32 v{fA}, v{vXf}, v{fA}")
    e(f"v_cvt_pk_bf16_f32 v{fA}, v{fA}, v{fA}")
    om = "0x00ff00ff" if F8 else "0x000f000f"
    e(f"s_mov_b32 exec_lo, {om}"); e(f"s_mov_b32 exec_hi, {om}")
    e(f"buffer_store_short v{fA}, v{vOutOff}, {srd(rOUT)}, 0 offen")
    e("s_mov_b64 exec, -1")
    e("s_cmp_lg_u32 s2, 0"); e("s_cbranch_scc1 L_done")
    e(f"v_mov_b32 v{vT}, s{sT}"); e(f"v_mov_b32 v{vT+1}, {WS_EPOCH}")
    e("s_mov_b64 exec, 1")
    e(f"buffer_store_dword v{vT}, v{vT+1}, {srd(rWS)}, 0 offen")
    e("s_mov_b64 exec, -1")
    lab("L_done")
    if stamps:
        e("s_waitcnt vmcnt(0)")
        stamp(7)
        e("s_waitcnt lgkmcnt(0)")
        lab("L_sdelay")
        e("s_sleep 8")
        e(f"s_memrealtime s[{t2}:{t3}]"); e("s_waitcnt lgkmcnt(0)")
        e(f"s_sub_u32 s{t2}, s{t2}, s84"); e(f"s_cmp_lt_u32 s{t2}, 4600"); e("s_cbranch_scc1 L_sdelay")
        e(f"s_mul_i32 s{t0}, s2, 5"); e(f"s_add_u32 s{t0}, s{t0}, s{sW}"); e(f"s_lshl_b32 s{t0}, s{t0}, 6"); e(f"s_add_u32 s{t0}, s{t0}, 0x{STAMP_OFF:x}")
        for i in range(16): e(f"v_mov_b32 v{vB+i}, s{84+i}")
        e(f"v_mov_b32 v{vT}, 0"); e(f"v_mov_b32 v{vT+1}, {XN + 4096}")
        e("s_mov_b64 exec, 1")
        for i in range(4): e(f"buffer_store_dwordx4 v[{vB+4*i}:{vB+4*i+3}], v{vT}, {srd(rWS)}, s{t0} offen offset:{16*i}")
        e(f"s_cmp_lg_u32 s{sW}, 3"); e("s_cbranch_scc1 L_end")
        for i in range(4): e(f"ds_read_b128 v[{vB+16+4*i}:{vB+16+4*i+3}], v{vT+1} offset:{16*i}")
        e("s_waitcnt lgkmcnt(0)")
        for i in range(4): e(f"buffer_store_dwordx4 v[{vB+16+4*i}:{vB+16+4*i+3}], v{vT}, {srd(rWS)}, s{t0} offen offset:{64+16*i}")
    lab("L_end")
    e("s_endpgm")

    lab("L_loader")
    if prio: e(f"s_setprio {prio}")
    e(f"s_mov_b64 s[{sVb}:{sVb+1}], s[52:53]"); e(f"s_mov_b64 s[{sKb}:{sKb+1}], s[{rK}:{rK+1}]")
    e(f"s_mov_b32 s{sFree}, 4")
    e(f"v_mov_b32 v{vK}, 0"); e(f"v_mov_b32 v{vK+1}, 0x7fffffff"); e(f"v_mov_b32 v{vK+2}, 0"); e(f"v_mov_b32 v{vK+3}, 0")
    for i in range(4): e(f"v_mov_b32 v{vK+4+i}, s{sFree}")
    for i in range(4): e(f"v_mov_b32 v{vK+8+i}, -1")
    e(f"ds_write_b128 v{vCtl}, v[{vK}:{vK+3}]"); e(f"ds_write_b128 v{vCtl}, v[{vK+4}:{vK+7}] offset:16"); e(f"ds_write_b128 v{vCtl}, v[{vK+8}:{vK+11}] offset:32"); e(f"ds_write_b64 v{vCtl}, v[{vK+2}:{vK+3}] offset:48")
    e(f"s_mul_i32 s{t0}, s{sS}, {SSTR}")
    for b in range(4):
        o = b*BSTR if nb == 4 else (b & 1)*BSTR + (b >> 1)*2*DB
        e(f"s_add_u32 s{sOff+b}, s{t0}, {o + STEP}")
        if not il: e(f"s_mov_b32 s{sCnt+b}, 0x7fffffff")
    e(f"s_mov_b32 s{sJmp}, {(KP+1)*3072}"); e(f"s_mov_b32 s{sStp}, {STEP}")
    e(f"ds_write_b64 v{vCtl}, v[{vK+2}:{vK+3}] offset:64")
    e(f"s_mov_b32 s{sRem}, 0x7fffffff"); e(f"s_mov_b32 s{sLag}, 0")
    e(f"s_cmp_eq_u32 s{sRole}, 6"); e(f"s_cselect_b32 s{sK1}, {K1-d6}, {K1}")
    e(f"s_mov_b32 s{sMask}, -1")
    lm = (1 << KH) | ((0xffffffff << min(KP, KC)) & 0xffffffff) | (((1 << KA) | (1 << KB)) if nb == 2 else 0)
    e(f"s_cselect_b32 s{sEvM}, 0x{(1 << (K1-d6)) | (1 << (K0-d6)):x}, 0"); e(f"s_cselect_b32 s{t0}, 0, 0x{(1 << K1) | (1 << K0):x}")
    e(f"s_or_b32 s{sEvM}, s{sEvM}, s{t0}"); e(f"s_or_b32 s{sEvM}, s{sEvM}, 0x{lm:x}"); e(f"s_mov_b32 s{sEvM+1}, -1")
    e(f"s_mov_b32 s{sKk}, 1"); e(f"s_mov_b32 s{sSlot}, {SLOT}"); e(f"s_mov_b32 s{sIss}, 4")
    e(f"s_mov_b32 s{sLand}, 0")
    e(f"s_mov_b32 s{sSpin}, {SPIN*8}")
    e(f"v_mov_b32 v{vT+3}, 0x7ffffff0")
    for i in range(11):
        q0, nrow = (64*i, 12) if i < 8 else (64*(i-8) - 8 + 42, 5)
        e(f"v_add_u32 v{vT+4}, {q0}, v{vLane}")
        e(f"v_mul_u32_u24 v{vT+5}, 49933, v{vT+4}"); e(f"v_lshrrev_b32 v{vT+5}, 21, v{vT+5}")
        e(f"v_mul_u32_u24 v{vT+6}, 42, v{vT+5}"); e(f"v_sub_u32 v{vT+6}, v{vT+4}, v{vT+6}")
        if i >= 8: e(f"v_subrev_u32 v{vT+5}, 1, v{vT+5}")
        e(f"v_cmp_gt_u32 vcc, 40, v{vT+6}")
        e(f"v_cmp_gt_u32 s[{t0}:{t1}], {12 if i < 8 else 4}, v{vT+5}")
        e(f"v_mul_u32_u24 v{vT+5}, 1280, v{vT+5}"); e(f"v_lshl_add_u32 v{vT+5}, v{vT+6}, 4, v{vT+5}")
        e(f"s_and_b64 vcc, vcc, s[{t0}:{t1}]")
        e(f"v_cndmask_b32 v{vWoOff+i}, v{vT+3}, v{vT+5}, vcc")
    e("s_waitcnt lgkmcnt(0)")
    e("s_barrier")
    def report(expr_s):
        e(f"s_max_i32 s{sLand}, s{sLand}, s{expr_s}")
        e(f"v_mov_b32 v{vT}, s{sLand}")
        e(f"ds_write_b32 v{vCtl}, v{vT}")
    def wait_free(nm, sneed):
        e(f"s_cmp_gt_u32 s{sFree}, s{sneed}"); e(f"s_cbranch_scc1 L_{nm}go")
        lab(f"L_{nm}chk")
        e(f"ds_read_b128 v[{vK}:{vK+3}], v{vCtl} offset:16")
        e("s_waitcnt lgkmcnt(0)")
        e(f"v_min_u32 v{vK}, v{vK}, v{vK+1}"); e(f"v_min3_u32 v{vK}, v{vK}, v{vK+2}, v{vK+3}"); nop(1)
        e(f"v_readfirstlane_b32 s{sFree}, v{vK}")
        e(f"s_sub_u32 s{sSpin}, s{sSpin}, 1"); e(f"s_cbranch_scc1 L_{nm}go")
        e(f"s_cmp_gt_u32 s{sFree}, s{sneed}"); e(f"s_cbranch_scc1 L_{nm}go")
        e("s_waitcnt vmcnt(0)")
        e(f"s_lshl_b32 s{t0}, s{sKk}, 2")
        report(t0)
        e("s_sleep 1")
        e(f"s_branch L_{nm}chk")
        lab(f"L_{nm}go")
    def issue_chunk(b, w):
        a_, r_ = divmod(w, 6)
        e(f"s_add_u32 m0, s{sSlot}, {b*REG}")
        e(f"s_sub_u32 s{sRep}, s{sIss}, {a_ + (1 if r_ > 3 else 0)}")
        e(f"s_waitcnt vmcnt({w})")
        for j in range(3): e(f"buffer_load_dwordx4 v{vLin}, {srd(rK)}, s{sOff+b} offen offset:{j*1024} nt lds")
        e(f"s_add_u32 m0, s{sSlot}, {b*REG + 3072}")
        if r_ == 0 or r_ > 3: report(sRep)
        e(f"s_add_u32 s{sIss}, s{sIss}, 1")
        e(f"s_waitcnt vmcnt({w})")
        for j in range(3): e(f"buffer_load_dwordx4 v{vLin}, {srd(rV)}, s{sOff+b} offen offset:{j*1024} nt lds")
        if 1 <= r_ <= 3: report(sRep)
        if il:
            e(f"s_add_u32 s{sOff+b}, s{sOff+b}, s{sStp}")
        else:
            e(f"s_sub_u32 s{sCnt+b}, s{sCnt+b}, 1"); e(f"s_cmp_eq_u32 s{sCnt+b}, 0")
            e(f"s_cselect_b32 s{t3}, s{sJmp}, s{sStp}"); e(f"s_cselect_b32 s{sCnt+b}, {32-KP}, s{sCnt+b}")
            e(f"s_add_u32 s{sOff+b}, s{sOff+b}, s{t3}")
    def issue_unit(w):
        for b in range(4):
            issue_chunk(b, w)
            if pref and b == 2:
                e(f"ds_read_b128 v[{vK+4}:{vK+7}], v{vCtl} offset:16")
        if pref:
            e("s_waitcnt lgkmcnt(1)")
            e(f"v_min_u32 v{vK+4}, v{vK+4}, v{vK+5}"); e(f"v_min3_u32 v{vK+4}, v{vK+4}, v{vK+6}, v{vK+7}")
    def lateness(srem):
        e("s_waitcnt lgkmcnt(0)")
        e(f"s_sub_u32 s{t0}, s{sNow}, s{sTgt}"); e(f"s_lshl_b32 s{t0}, s{t0}, 6")
        e(f"s_mul_i32 s{t1}, s{srem}, s{sTau}"); e(f"s_add_u32 s{t0}, s{t0}, s{t1}")
    def pick():
        for i in reversed(range(len(lv))):
            if lv[i][1] > W0:
                e(f"s_cmp_gt_i32 s{t0}, {64*(lv[i][0]+bias)}"); e(f"s_cbranch_scc1 L_ld_w{i+1}")
        for i in range(len(lv)):
            if lv[i][1] < W0:
                e(f"s_cmp_lt_i32 s{t0}, {64*(lv[i][0]+bias)}"); e(f"s_cbranch_scc1 L_ld_w{i+1}")
        e("s_branch L_ld_w0")
    lab("L_ld_top")
    wait_free("ld_r", sKk)
    e(f"s_bitcmp1_b64 s[{sEvM}:{sEvM+1}], s{sKk}"); e("s_cbranch_scc1 L_ld_evt")
    lab("L_ld_w0")
    issue_unit(W0)
    lab("L_ld_nxt")
    e(f"s_add_u32 s{sSlot}, s{sSlot}, {SLOT}")
    if pref: e(f"v_readfirstlane_b32 s{sFree}, v{vK+4}")
    lab("L_ld_adv")
    e(f"s_cmp_eq_u32 s{sSlot}, {REG}"); e(f"s_cselect_b32 s{sSlot}, 0, s{sSlot}")
    e(f"s_add_u32 s{sKk}, s{sKk}, 1")
    if stamps:
        for kk, slot in (lst or ((8, 1), (20, 2))):
            e(f"s_cmp_eq_u32 s{sKk}, {kk}"); e(f"s_cbranch_scc0 L_ld_ns{kk}")
            e(f"s_memrealtime s[{84+2*slot}:{85+2*slot}]"); e("s_waitcnt lgkmcnt(0)"); lab(f"L_ld_ns{kk}")
    e("s_branch L_ld_top")
    for i in range(len(lv)):
        lab(f"L_ld_w{i+1}")
        issue_unit(lv[i][1])
        e("s_branch L_ld_nxt")
    lab("L_ld_evt")
    e(f"s_memrealtime s[{sNow}:{sNow+1}]")
    e(f"s_cmp_gt_u32 s{sKk}, {KP}"); e("s_cbranch_scc1 L_ld_end")
    e(f"s_cmp_eq_u32 s{sKk}, {KP}"); e("s_cbranch_scc1 L_ld_part")
    e(f"s_cmp_lg_u32 s{sKk}, {KH}"); e("s_cbranch_scc1 L_ld_e2")
    e(f"s_mov_b64 s[{rK}:{rK+1}], s[{sVb}:{sVb+1}]")
    e(f"s_add_u32 s{rV}, s{sVb}, {DB}"); e(f"s_addc_u32 s{rV+1}, s{sVb+1}, 0")
    for b in range(4): e(f"s_sub_u32 s{sOff+b}, s{sOff+b}, {KH*STEP if nb == 4 else 2*BSTR + KA*STEP}")
    lab("L_ld_e2")
    if nb == 2:
        e(f"s_cmp_eq_u32 s{sKk}, {KA}"); e(f"s_cselect_b32 s{t0}, {2*BSTR - KA*STEP}, 0")
        e(f"s_cmp_eq_u32 s{sKk}, {KB}"); e(f"s_cselect_b32 s{t0}, {2*BSTR - KA*STEP}, s{t0}")
        for b in range(4): e(f"s_add_u32 s{sOff+b}, s{sOff+b}, s{t0}")
    if KC < KP:
        e(f"s_cmp_ge_u32 s{sKk}, {KC}"); e("s_cbranch_scc1 L_ld_ctl")
    e("s_waitcnt lgkmcnt(0)")
    e(f"s_add_u32 s{t0}, s{sKk}, {K1-K0}"); e(f"s_cmp_eq_u32 s{t0}, s{sK1}"); e(f"s_cselect_b32 s{sT0}, s{sNow}, s{sT0}")
    e(f"s_cmp_lg_u32 s{sKk}, s{sK1}"); e("s_cbranch_scc1 L_ld_w0")
    e(f"s_sub_u32 s{t1}, s{sNow}, s{sT0}"); e(f"s_lshl_b32 s{t1}, s{t1}, 8")
    e(f"s_sub_u32 s{t2}, {KP}, s{sK1}"); e(f"s_lshl_b32 s{t2}, s{t2}, 2"); e(f"s_or_b32 s{t1}, s{t1}, s{t2}")
    e(f"v_mov_b32 v{vK}, s{sNow}"); e(f"v_mov_b32 v{vK+1}, s{t1}")
    e(f"ds_write_b64 v{vCtl}, v[{vK}:{vK+1}] offset:56")
    e("s_branch L_ld_w0")
    if KC < KP:
        lab("L_ld_ctl")
        e(f"s_cmp_lg_u32 s{sMask}, -1"); e("s_cbranch_scc1 L_ld_ct2")
        e(f"ds_read_b128 v[{vK}:{vK+3}], v{vCtl} offset:32")
        e("s_waitcnt lgkmcnt(0)")
        e(f"v_readfirstlane_b32 s{t0}, v{vK}"); e(f"v_readfirstlane_b32 s{t1}, v{vK+1}")
        e(f"v_readfirstlane_b32 s{sTgt}, v{vK+2}"); e(f"v_readfirstlane_b32 s{sTau}, v{vK+3}")
        e(f"s_cmp_eq_u32 s{t1}, -1"); e("s_cbranch_scc1 L_ld_w0")
        e(f"s_sub_u32 s{sMask}, s{t1}, s{t0}"); e(f"s_add_u32 s{sMask}, s{sMask}, {4*KP}")
        lab("L_ld_ct2")
        e(f"s_lshl_b32 s{t2}, s{sKk}, 2"); e(f"s_sub_u32 s{t2}, s{sMask}, s{t2}")
        lateness(t2)
        pick()
    lab("L_ld_end")
    e(f"s_cmp_eq_u32 s{sKk}, {KP+3}"); e(f"s_cselect_b32 s{t0}, s{sLag}, 0"); e(f"s_add_u32 s{sIss}, s{sIss}, s{t0}"); e(f"s_sub_u32 s{sLag}, s{sLag}, s{t0}")
    e(f"s_cmp_eq_u32 s{sRem}, 0"); e("s_cbranch_scc1 L_ld_drain")
    e(f"s_lshl_b32 s{t2}, s{sRem}, 2")
    lateness(t2)
    e(f"s_sub_u32 s{sRem}, s{sRem}, 1")
    pick()
    lab("L_ld_part")
    stamp(5)
    lab("L_ld_pw")
    e(f"ds_read_b128 v[{vK}:{vK+3}], v{vCtl} offset:32")
    e("s_waitcnt lgkmcnt(0)")
    e(f"v_readfirstlane_b32 s{t0}, v{vK}"); e(f"v_readfirstlane_b32 s{t1}, v{vK+1}")
    e(f"v_readfirstlane_b32 s{sTgt}, v{vK+2}"); e(f"v_readfirstlane_b32 s{sTau}, v{vK+3}")
    e(f"s_sub_u32 s{sSpin}, s{sSpin}, 1"); e("s_cbranch_scc1 L_ld_drain")
    e(f"s_cmp_lg_u32 s{t1}, -1"); e("s_cbranch_scc1 L_ld_pg")
    e("s_waitcnt vmcnt(0)")
    e(f"s_lshl_b32 s{t0}, s{sKk}, 2")
    report(t0)
    e("s_sleep 1")
    e("s_branch L_ld_pw")
    lab("L_ld_pg")
    e(f"s_mov_b64 s[{rK}:{rK+1}], s[{sKb}:{sKb+1}]"); e(f"s_mov_b64 s[{rV}:{rV+1}], s[{sVb}:{sVb+1}]"); e(f"s_mov_b32 s{rV+2}, s{rK+2}")
    e(f"s_mov_b32 s{sStp}, 3072")
    e(f"s_sub_u32 s{sRem}, s{t1}, s{t0}")
    e(f"s_lshr_b32 s{sRem}, s{sRem}, 2")
    e(f"s_mov_b32 s{sMask}, 0")
    for b in range(4):
        e(f"s_add_u32 s{t2}, s{t0}, {3-b}"); e(f"s_lshr_b32 s{t2}, s{t2}, 2")
        e(f"s_add_u32 s{t3}, s{t1}, {3-b}"); e(f"s_lshr_b32 s{t3}, s{t3}, 2")
        e(f"s_sub_u32 s{t3}, s{t3}, s{t2}"); e(f"s_sub_u32 s{t3}, s{t3}, s{sRem}"); e(f"s_lshl_b32 s{t3}, s{t3}, {b}"); e(f"s_or_b32 s{sMask}, s{sMask}, s{t3}")
        if not il:
            R = 32 - KP
            e(f"s_mul_i32 s{t3}, s{t2}, {(65536 + R - 1)//R}"); e(f"s_lshr_b32 s{t3}, s{t3}, 16")
            e(f"s_mul_i32 s{sCnt+b}, s{t3}, {R}"); e(f"s_sub_u32 s{sCnt+b}, s{sCnt+b}, s{t2}"); e(f"s_add_u32 s{sCnt+b}, s{sCnt+b}, {R}")
            e(f"s_mul_i32 s{t3}, s{t3}, {KP}"); e(f"s_add_u32 s{t2}, s{t2}, s{t3}")
            e(f"s_mul_i32 s{t2}, s{t2}, 3072"); e(f"s_add_u32 s{sOff+b}, s{t2}, {KP*3072 + b*BSTR}")
        else:
            e(f"s_mul_i32 s{t2}, s{t2}, 3072"); e(f"s_add_u32 s{sOff+b}, s{t2}, {8*KP*3072 + b*BSTR}")
    e(f"v_mov_b32 v{vT+1}, s{sMask}"); e(f"ds_write_b32 v{vCtl}, v{vT+1} offset:48")
    e(f"s_bcnt1_i32_b32 s{t0}, s{sMask}"); e(f"s_sub_u32 s{sLag}, 4, s{t0}")
    for b in range(4):
        e(f"s_bitcmp0_b32 s{sMask}, {b}"); e(f"s_cbranch_scc1 L_ld_ps{b}")
        issue_chunk(b, W0)
        lab(f"L_ld_ps{b}")
    e(f"s_add_u32 s{sSlot}, s{sSlot}, {SLOT}")
    e("s_branch L_ld_adv")
    def weights(blocks, dp, win):
        j0 = blocks[0]
        e(f"s_lshl_b32 s{t0}, s{sH}, 2"); e(f"s_lshr_b32 s{t1}, s{sS}, 1"); e(f"s_add_u32 s{t0}, s{t0}, s{t1}")
        e(f"s_mul_i32 s{t2}, s{t0}, {12*1280}"); e(f"s_mul_i32 s{t0}, s{t0}, {48*1280}")
        e(f"s_and_b32 s{t1}, s{sS}, 1"); e(f"s_mul_i32 s{t1}, s{t1}, 640"); e(f"s_add_u32 s{t0}, s{t0}, s{t1}"); e(f"s_add_u32 s{t2}, s{t2}, s{t1}")
        if j0:
            e(f"s_add_u32 s{t0}, s{t0}, {j0*12*1280}"); e(f"s_add_u32 s{t2}, s{t2}, {j0*4*1280}")
        e(f"s_add_u32 s{t1}, s{sSlot}, {j0*REG}")
        nw = 0; rj = 0
        for j in blocks:
            for i in range(11 if j < 3 else 8):
                if nw % 3 == 0:
                    e(f"s_waitcnt vmcnt({win})")
                    c = 0
                    while rj + c < dp and 6*(dp-1-rj-c) + nw >= win: c += 1
                    if c:
                        if c > 1: e(f"s_add_u32 s{sIss}, s{sIss}, {c-1}")
                        if rj + c == dp: e(f"s_add_u32 s{sIss}, s{sIss}, s{sLag}")
                        report(sIss); e(f"s_add_u32 s{sIss}, s{sIss}, 1"); rj += c
                e(f"s_mov_b32 m0, s{t1}"); e(f"s_add_u32 s{t1}, s{t1}, {1024 if i < 10 else REG - 10*1024}")
                e(f"buffer_load_dwordx4 v{vWoOff+i}, {srd(rWO if i < 8 else rWD)}, s{t0 if i < 8 else t2} offen nt lds")
                nw += 1
            e(f"s_add_u32 s{t0}, s{t0}, {12*1280}"); e(f"s_add_u32 s{t2}, s{t2}, {4*1280}")
        if 3 in blocks:
            for i in range(4): e(f"v_mov_b32 v{vK+i}, 0")
            e(f"v_add_u32 v{vT+2}, s{t1}, v{vLin}")
            for i in range(3): e(f"ds_write_b128 v{vT+2}, v[{vK}:{vK+3}] offset:{1024*i}")
        return nw, rj
    lab("L_ld_drain")
    stamp(3)
    e(f"s_cmp_eq_u32 s{sSlot}, {5*SLOT}"); e(f"s_cselect_b32 s{sSlot}, 0, s{sSlot}"); e(f"s_cselect_b32 s{t2}, 2, 1")
    e(f"s_add_u32 s{t2}, s{t2}, s{sKk}")
    e(f"v_mov_b32 v{vT+2}, s{sSlot}"); e(f"ds_write_b32 v{vCtl}, v{vT+2} offset:12")
    e(f"v_mov_b32 v{vT+1}, s{sKk}"); e(f"ds_write_b32 v{vCtl}, v{vT+1} offset:4")
    e(f"s_sub_u32 s{sIss}, s{sIss}, {DPM-1}")
    wait_free("ld_e", t2)
    def drain(win):
        nw, rj = weights([0, 1, 2, 3], DPM, win)
        while rj < DPM:
            e(f"s_waitcnt vmcnt({6*(DPM-1-rj) + nw})")
            if rj == DPM-1: e(f"s_add_u32 s{sIss}, s{sIss}, s{sLag}")
            report(sIss); e(f"s_add_u32 s{sIss}, s{sIss}, 1"); rj += 1
    if dl:
        lateness(sRem)
        for i in reversed(range(len(dl))):
            e(f"s_cmp_gt_i32 s{t0}, {64*dl[i][0]}"); e(f"s_cbranch_scc1 L_ld_d{i+1}")
    drain(dwin)
    for i in range(len(dl)):
        e("s_branch L_ld_fin")
        lab(f"L_ld_d{i+1}")
        drain(dl[i][1])
    lab("L_ld_fin")
    stamp(4)
    if touch & 4:
        e(f"s_and_b32 s{t2}, s{sS}, 1"); e(f"s_lshl_b32 s{t2}, s{t2}, 7"); e(f"s_lshl_b32 s{t1}, s{sH}, 2")
        e(f"s_add_u32 s{t2}, s{t2}, s{t1}"); e(f"s_lshr_b32 s{t1}, s{sS}, 1"); e(f"s_add_u32 s{t2}, s{t2}, s{t1}")
        e(f"s_mul_i32 s{t2}, s{t2}, 5120"); e(f"s_add_u32 s{t2}, s{t2}, 0x{WS_PO:x}")
        e(f"v_lshlrev_b32 v{vT+3}, 7, v{vLane}")
        if twait >= 0: e(f"s_waitcnt vmcnt({twait})")
        e("s_mov_b32 exec_hi, 0xff")
        e(f"buffer_load_dword v{vT+4}, v{vT+3}, {srd(rWS)}, s{t2} offen {tflag}")
        e("s_mov_b32 exec_hi, -1")
        e("s_waitcnt vmcnt(1) lgkmcnt(0)")
    else:
        e("s_waitcnt vmcnt(0) lgkmcnt(0)")
    if earlyb:
        e(f"v_mov_b32 v{vT}, 1"); e(f"ds_write_b32 v{vCtl}, v{vT} offset:52"); e("s_waitcnt lgkmcnt(0)")
    if stamps:
        e(f"s_sub_u32 s{t0}, s{sTgt}, s84"); e(f"s_add_u32 s96, s84, s{t0}"); e("s_addc_u32 s97, s85, 0")
        stamp(7, True)
        for i in range(16): e(f"v_mov_b32 v{vB+i}, s{84+i}")
        e(f"v_mov_b32 v{vT+1}, {XN + 4096}")
        for i in range(4): e(f"ds_write_b128 v{vT+1}, v[{vB+4*i}:{vB+4*i+3}] offset:{16*i}")
        e("s_waitcnt lgkmcnt(0)")
    e("s_endpgm")

    L.append('.section .rodata,"a"'); L.append(".p2align 6"); L.append(f".amdhsa_kernel {NAME}_kernel")
    L.append(f"  .amdhsa_next_free_vgpr {NV}"); L.append("  .amdhsa_next_free_sgpr 102"); L.append(f"  .amdhsa_accum_offset {(NV+3)//4*4}")
    L.append("  .amdhsa_group_segment_fixed_size 0"); L.append("  .amdhsa_kernarg_size 96"); L.append("  .amdhsa_user_sgpr_count 2")
    L.append("  .amdhsa_user_sgpr_kernarg_segment_ptr 1"); L.append("  .amdhsa_system_sgpr_workgroup_id_x 1")
    L.append("  .amdhsa_float_denorm_mode_32 3"); L.append("  .amdhsa_float_denorm_mode_16_64 3")
    L.append(".end_amdhsa_kernel")
    return "\n".join(L) + "\n"


def emit(variants):
    import hazard
    for name, kw in variants:
        t = gen(**kw)
        open(name, "w").write(t)
        errs = hazard.check(t)
        print(name, "hazards:", len(errs))
        for x in errs: print("  ", x)


if __name__ == "__main__":
    P = {0:0, "x":1, "ln":2, "w1":3, 1:4, "st":5, 2:6, 7:7}
    B = dict(stamps=True)
    emit((("k14.s", dict()), ("k14s.s", B),
          ("k14s_a.s", dict(B, cref=False)),
          ("k14s_b.s", dict(B, lv=((-15, 17), (10, 22), (30, 27), (60, 38)))),
          ("k14s_c.s", dict(B, lv=((-30, 16), (-10, 18), (10, 22), (30, 27), (60, 38)), W0=20)),
          ("k14s_d.s", dict(B, K0=8, K1=15, K2=17, KC=18)),
          ("k14s_e.s", dict(B, bias=10)),
          ("k14s_f.s", dict(B, bias=-10)),
          ("k14s_g.s", dict(B, K0=12, K1=19, K2=22, KC=23)),
          ))
```
